```python
import torch

def _softmax(x, axis=-1):
    return torch.softmax(x, dim=axis)
def _gelu(x):
    return torch.nn.functional.gelu(x, approximate="tanh")
def _silu(x):
    return torch.nn.functional.silu(x)
def _sigmoid(x):
    return torch.sigmoid(x)
def _layernorm(x, axis=-1, eps=1e-5):
    m = x.mean(dim=axis, keepdim=True)
    v = x.var(dim=axis, keepdim=True, unbiased=False)
    return (x - m) / torch.sqrt(v + eps)
def _scatter_add(tgt, idx, src, axis=0):
    return tgt.clone().index_add_(axis, idx, src)
def _segment_sum(src, seg, n):
    out = torch.zeros((n,) + src.shape[1:], dtype=src.dtype)
    return out.index_add_(0, seg, src)
def _pad(x, pw):
    flat = tuple(v for pair in reversed(pw) for v in pair)
    return torch.nn.functional.pad(x, flat)

kernel_name = 'standalone__modern_conv_block_convnext_v2__vision'

def setup_inputs():

    _w = (lambda a: (lambda t: t.to(torch.bfloat16) if t.is_floating_point() else t)(torch.as_tensor(a)))
    H = W = 224
    C = 192
    K = 3
    return {
        "x": _w((lambda *s: torch.randn(*s, dtype=torch.bfloat16) * 0.05)(1, H, W, C)),
        "dw": _w((lambda *s: torch.randn(*s, dtype=torch.bfloat16) * 0.05)(K, K, C)),
        "w1": _w((lambda *s: torch.randn(*s, dtype=torch.bfloat16) * 0.05)(C, 4 * C)),
        "w2": _w((lambda *s: torch.randn(*s, dtype=torch.bfloat16) * 0.05)(4 * C, C)),
        "grn_gamma": _w((lambda *s: torch.randn(*s, dtype=torch.bfloat16) * 0.05)(4 * C)),
        "grn_beta": _w((lambda *s: torch.randn(*s, dtype=torch.bfloat16) * 0.05)(4 * C)),
    }

def reference(x, dw, w1, w2, grn_gamma, grn_beta):
    B, H, W, C = x.shape
    K = dw.shape[0]
    pad = K // 2
    xp = _pad(x, ((0,0),(pad,pad),(pad,pad),(0,0)))
    out = torch.zeros_like(x)
    for i in range(K):
        for j in range(K):
            out = out + xp[:, i:i+H, j:j+W, :] * dw[i, j][None, None, None, :]
    h = _layernorm(out, axis=-1)
    h = torch.einsum('bhwc,ce->bhwe', h, w1)
    h = _gelu(h)
    gx = torch.sqrt((h * h).sum(axis=(1, 2), keepdims=True) + 1e-6)
    nx = gx / (gx.mean(axis=-1, keepdims=True) + 1e-6)
    h = grn_gamma * (h * nx) + grn_beta + h
    h = torch.einsum('bhwe,ec->bhwc', h, w2)
    return x + h
```

```python
import re, collections

REG_RE = re.compile(r'\b([vas])(\d+)\b|\b([vas])\[(\d+):(\d+)\]|\b(vcc|exec|exec_lo|exec_hi|vcc_lo|vcc_hi|m0|scc)\b')

def regs_of(tok):
    out = []
    for m in REG_RE.finditer(tok):
        if m.group(1):
            out.append((m.group(1), int(m.group(2))))
        elif m.group(3):
            out += [(m.group(3), i) for i in range(int(m.group(4)), int(m.group(5)) + 1)]
        else:
            n = m.group(6)
            if n.startswith('vcc'): out += [('vcc', 0)]
            elif n.startswith('exec'): out += [('exec', 0)]
            elif n == 'm0': out += [('m0', 0)]
    return out

TRANS = ('v_exp_f32', 'v_rcp_f32', 'v_rsq_f32', 'v_sqrt_f32', 'v_log_f32')

class Ins:
    __slots__ = ('text', 'op', 'rd', 'wr', 'kind', 'passes', 'srcc', 'tag', 'states', 'sdata', 'dpp', 'lds')
    def __init__(s, text):
        s.text = text
        t = text.split(';')[0].strip()
        parts = t.split(None, 1)
        s.op = parts[0]
        rest = parts[1] if len(parts) > 1 else ''
        ops = [o.strip() for o in split_ops(rest)]
        s.rd = set(); s.wr = set(); s.passes = 0; s.srcc = set(); s.tag = None; s.states = 1
        s.sdata = set(); s.dpp = False; s.lds = False
        op = s.op
        if op.endswith(':') or op.startswith('.'):
            s.kind = 'label'; s.states = 0; return
        if op == 's_nop':
            s.kind = 'nop'; s.states = int(ops[0]) + 1; return
        if op in ('s_waitcnt', 's_barrier', 's_endpgm', 's_sleep', 's_setprio', 's_branch') or op.startswith('s_cbranch'):
            s.kind = 'ctl'
            if 'vcc' in op: s.rd.add(('vcc', 0))
            if 'exec' in op: s.rd.add(('exec', 0))
            return
        if op.startswith('v_mfma'):
            s.kind = 'mfma'
            s.passes = 8 if '32x32x16' in op else 4
            s.wr = set(regs_of(ops[0]))
            s.rd = set(regs_of(ops[1]) + regs_of(ops[2]) + regs_of(ops[3]))
            s.srcc = set(regs_of(ops[3]))
            return
        if op.startswith('ds_'):
            s.kind = 'ds'
            if op.startswith('ds_read') or op.startswith('ds_bpermute') or '_rtn' in op:
                s.wr = set(regs_of(ops[0])); s.rd = set(r for o in ops[1:] for r in regs_of(o))
            else:
                s.rd = set(r for o in ops for r in regs_of(o))
            return
        if op.startswith('buffer_') or op.startswith('global_'):
            s.kind = 'vmem'
            words = rest.replace(',', ' ').split()
            s.lds = 'lds' in words
            if op in ('buffer_wbl2', 'buffer_inv'):
                return
            if 'load' in op and not s.lds:
                s.wr = set(regs_of(ops[0])); s.rd = set(r for o in ops[1:] for r in regs_of(o))
            elif 'load' in op and s.lds:
                s.rd = set(r for o in ops for r in regs_of(o)); s.rd.add(('m0', 0))
            else:
                s.rd = set(r for o in ops for r in regs_of(o))
                if 'atomic' in op and 'sc0' in words:
                    s.wr = set(regs_of(ops[0] if op.startswith('buffer_') else ops[0]))
                if 'x4' in op or 'x3' in op:
                    s.sdata = set(regs_of(ops[0] if op.startswith('buffer_') else ops[1]))
            return
        if op.startswith('s_load') or op.startswith('s_memtime') or op.startswith('s_memrealtime'):
            s.kind = 'smem'
            s.wr = set(regs_of(ops[0])); s.rd = set(r for o in ops[1:] for r in regs_of(o))
            return
        if op.startswith('s_'):
            s.kind = 'salu'
            if op.startswith('s_cmp') or op.startswith('s_bitcmp'):
                s.rd = set(r for o in ops for r in regs_of(o))
            else:
                s.wr = set(regs_of(ops[0])); s.rd = set(r for o in ops[1:] for r in regs_of(o))
                if 'saveexec' in op: s.wr.add(('exec', 0)); s.rd.add(('exec', 0))
            return
        if op.startswith('v_'):
            s.kind = 'valu'
            base = op.replace('_e32', '').replace('_e64', '').replace('_dpp', '').replace('_sdwa', '')
            if base in TRANS: s.kind = 'trans'
            s.dpp = '_dpp' in op or 'row_' in rest or 'quad_perm' in rest
            if base.startswith('v_permlane') and 'swap' in base:
                s.kind = 'perm'
                s.wr = set(regs_of(ops[0]) + regs_of(ops[1])); s.rd = set(s.wr); return
            s.wr = set(regs_of(ops[0]))
            nd = 1
            if base.startswith('v_add_co') or base.startswith('v_addc_co') or base.startswith('v_sub_co'):
                s.wr |= set(regs_of(ops[1])); nd = 2
            s.rd = set(r for o in ops[nd:] for r in regs_of(o))
            if base.startswith('v_fmac') or base.startswith('v_pk_fmac') or s.dpp or base.startswith('v_writelane') or base.startswith('v_dot2c'):
                s.rd |= set(regs_of(ops[0]))
            if base.startswith('v_cmpx'): s.wr.add(('exec', 0))
            return
        raise ValueError('unknown instr: ' + text)

def split_ops(rest):
    out = []; depth = 0; cur = ''
    for ch in rest:
        if ch == '[': depth += 1
        if ch == ']': depth -= 1
        if ch == ',' and depth == 0:
            out.append(cur); cur = ''
        else: cur += ch
    if cur.strip(): out.append(cur)
    return out

def isvec(r): return r[0] in ('v', 'a')

class Asm:
    def __init__(s):
        s.ins = []
        s.vmq = []
        s.lgq = []
        s.nops = collections.Counter()
        s.sect = 'init'
        s.nwaits = collections.Counter()
        s.smem_pending = set()
    def raw(s, text):
        i = Ins(text); s.ins.append(i); return i
    def label(s, name):
        s.raw(name + ':')
    def comment(s, t):
        i = Ins('.c'); i.text = '; ' + t; s.ins.append(i)
    def _autowait(s, i):
        touched = i.rd | i.wr
        if s.smem_pending and (touched & s.smem_pending):
            s._emit_wait(lg=0)
        need_vm = None; need_lg = None
        for k in range(len(s.vmq) - 1, -1, -1):
            if s.vmq[k][1] & touched:
                need_vm = len(s.vmq) - 1 - k; break
        for k in range(len(s.lgq) - 1, -1, -1):
            if s.lgq[k][1] & touched:
                need_lg = len(s.lgq) - 1 - k; break
        if need_vm is not None or need_lg is not None:
            s._emit_wait(vm=need_vm, lg=need_lg)
    def _emit_wait(s, vm=None, lg=None):
        parts = []
        if vm is not None:
            vm = min(vm, 63)
            if vm < len(s.vmq):
                parts.append('vmcnt(%d)' % vm); s.vmq = s.vmq[len(s.vmq) - vm:] if vm else []
        if lg is not None:
            if s.smem_pending: lg = 0
            lg = min(lg, 15)
            if lg < len(s.lgq) or s.smem_pending:
                parts.append('lgkmcnt(%d)' % lg); s.lgq = s.lgq[len(s.lgq) - lg:] if lg else []
                if lg == 0: s.smem_pending = set()
        if parts:
            s.nwaits[s.sect] += 1
            s._append(Ins('s_waitcnt ' + ' '.join(parts)))
    def wait_vm(s, tags=None, n=None):
        if n is not None: s._emit_wait(vm=n); return
        if isinstance(tags, str): tags = [tags]
        for k in range(len(s.vmq) - 1, -1, -1):
            if s.vmq[k][0] in tags:
                s._emit_wait(vm=len(s.vmq) - 1 - k); return
    def wait_lg(s, tags=None, n=None):
        if n is not None: s._emit_wait(lg=n); return
        if isinstance(tags, str): tags = [tags]
        for k in range(len(s.lgq) - 1, -1, -1):
            if s.lgq[k][0] in tags:
                s._emit_wait(lg=len(s.lgq) - 1 - k); return
    def wait_both(s, vmtags=None, lgtags=None, vm=None, lg=None):
        if vmtags is not None:
            if isinstance(vmtags, str): vmtags = [vmtags]
            for k in range(len(s.vmq) - 1, -1, -1):
                if s.vmq[k][0] in vmtags: vm = len(s.vmq) - 1 - k; break
        if lgtags is not None:
            if isinstance(lgtags, str): lgtags = [lgtags]
            for k in range(len(s.lgq) - 1, -1, -1):
                if s.lgq[k][0] in lgtags: lg = len(s.lgq) - 1 - k; break
        s._emit_wait(vm=vm, lg=lg)
    def forget(s):
        s.vmq = []; s.lgq = []; s.smem_pending = set()
    def _need(s, c):
        need = 0; dist = 0
        cv = c.kind in ('valu', 'trans', 'perm')
        for p in reversed(s.ins):
            if dist > 21: break
            if p.kind == 'label':
                continue
            req = 0
            pv = p.kind in ('valu', 'trans', 'perm')
            if p.kind == 'mfma':
                big = 12 if p.passes == 8 else 8
                if c.kind == 'mfma':
                    if p.wr & (c.rd - c.srcc): req = max(req, big)
                    if p.wr & c.srcc:
                        if not (c.srcc == p.wr and c.passes == p.passes): req = max(req, 10 if p.passes == 8 else 6)
                    elif p.wr & c.wr: req = max(req, 10 if p.passes == 8 else 6)
                elif cv or c.kind in ('ds', 'vmem'):
                    if p.wr & (c.rd | c.wr): req = max(req, big)
                if (cv or c.kind in ('ds', 'vmem')) and (p.srcc & c.wr): req = max(req, 7 if p.passes == 8 else 3)
            if pv:
                vw = set(r for r in p.wr if isvec(r)); sw = set(r for r in p.wr if r[0] in ('s', 'vcc'))
                if c.kind == 'mfma' and (vw & c.rd): req = max(req, 2)
                if c.kind == 'perm' and (vw & c.rd): req = max(req, 2)
                if cv and c.dpp and (vw & c.rd): req = max(req, 2)
                if c.op.startswith('v_readfirstlane') or c.op.startswith('v_readlane'):
                    if vw & c.rd: req = max(req, 1)
                    if sw & c.rd: req = max(req, 4)
                if p.kind == 'trans' and cv and c.kind != 'trans' and (vw & c.rd): req = max(req, 1)
                if p.kind == 'trans' and c.kind in ('ds', 'vmem') and (vw & c.rd): req = max(req, 1)
                if sw & c.rd:
                    if c.kind == 'vmem': req = max(req, 5)
                    elif cv: req = max(req, 2)
                if ('exec', 0) in p.wr:
                    if c.dpp: req = max(req, 5)
                    if c.kind in ('perm', 'mfma') or c.op.startswith('v_read'): req = max(req, 4)
                if 'sdwa' in p.op or 'op_sel' in p.text and not p.op.startswith('v_pk'):
                    if cv and (vw & (c.rd | c.wr)): req = max(req, 1)
            if p.kind == 'salu' and ('m0', 0) in p.wr and c.kind == 'vmem' and c.lds: req = max(req, 1)
            if p.kind == 'vmem' and p.sdata and (p.sdata & c.wr): req = max(req, 2)
            need = max(need, req - dist)
            dist += p.states
        return need
    def _append(s, i):
        n = s._need(i)
        if n > 0:
            s.nops[s.sect] += n
            while n > 0:
                k = min(n, 16); s.ins.append(Ins('s_nop %d' % (k - 1))); n -= k
        s.ins.append(i)
    def I(s, text, tag=None):
        i = Ins(text)
        if i.kind in ('label',):
            s.ins.append(i); return
        s._autowait(i)
        s._append(i)
        if i.kind == 'vmem' and i.op not in ():
            s.vmq.append((tag, set(i.wr)))
            if len(s.vmq) > 63: s.vmq_over = True
        elif i.kind == 'ds':
            s.lgq.append((tag, set(i.wr)))
        elif i.kind == 'smem' and not i.op.startswith('s_mem'):
            s.smem_pending |= i.wr
    def text(s):
        out = []
        for i in s.ins:
            if i.kind == 'label': out.append(i.text)
            else: out.append('  ' + i.text)
        return '\n'.join(out) + '\n'
    def count(s):
        return sum(1 for i in s.ins if i.kind != 'label')

def vr(b, n=1): return 'v%d' % b if n == 1 else 'v[%d:%d]' % (b, b + n - 1)
def ar(b, n=1): return 'a%d' % b if n == 1 else 'a[%d:%d]' % (b, b + n - 1)
def sr(b, n=1): return 's%d' % b if n == 1 else 's[%d:%d]' % (b, b + n - 1)
def R(x, n=1):
    return vr(x[1], n) if x[0] == 'v' else ar(x[1], n)
```

```python
from asmlib import *
import gen as G
from gen import *

def gdest(eb, t):
    if eb == 0: return ('l', t)
    if eb == 1 and t == 0: return ('l', 7)
    if eb == 1: return ('v', 104 + 8 * (t - 1))
    if eb == 2: return ('v', 152 + 8 * t)
    if eb == 3: return ('a', 128 + 8 * t)
    if eb == 4: return ('a', 184 + 8 * t)
    return ('a', 240 + 8 * t) if t < 2 else ('a', 32 + 8 * (t - 2))
def w1reg(eb, ks):
    if eb == 0: return vr(V_W10 + 4 * ks, 4)
    if eb == 1: return vr(V_W11 + 4 * ks, 4)
    return ar((A_W1A if eb % 2 == 0 else A_W1B) + 4 * ks, 4)

STB2 = 40960
CNT_OFF = None
V_FLAG, V_SA = 102, 103
FA, FB = 0, 48
V_EW, V_ER, V_OUT, V_XL = 97, 98, 99, 102
V_S, V_RAW, V_TMP = 208, 216, 240
A_ACC = [0, 16]
A_BIAS = [72, 112]
A_X, A_ID, A_GL = 88, 100, 104
KORD = [11, 6, 7, 8, 9, 10, 4, 5, 2, 3, 0, 1]
SPIN_MAX = 1 << 18

def raw0_reg(ks, hr):
    if ks in (6, 7, 8): return V_RAW + (ks - 6) * 8 + 4 * hr
    if ks in (9, 10): return V_TMP + (ks - 9) * 8 + 4 * hr
    if ks == 11: return FA + 40 + 4 * hr
    return FB + ks * 8 + 4 * hr

def gen_main(a, cfg):
    I = a.I
    L = V_LANE
    ws = srd(SRD_WS)
    cnt_off = WS_SUM + cfg.R * 3072
    a.sect = 'p1'
    I('s_mul_i32 s40, s%d, 224' % S_R0)
    I('s_add_u32 s40, s40, s%d' % S_C0)
    I('s_mul_i32 s%d, s40, 384' % S_ROW)
    for t in range(1, 7): I('s_add_u32 s%d, s%d, %d' % (S_ROW + t, S_ROW + t - 1, 224 * 384))
    I('s_and_b32 s40, s2, %d' % (cfg.R - 1))
    I('s_mul_i32 s40, s40, 3072')
    I('s_mul_i32 s41, s%d, 768' % S_W)
    I('s_add_u32 s40, s40, s41')
    I('s_add_u32 s%d, s40, %d' % (S_AT, WS_SUM))
    I('s_mul_i32 s%d, s%d, 73728' % (S_W1F, S_W))
    I('s_mul_i32 s%d, s%d, 147456' % (S_W2, S_W))
    I('s_add_u32 s%d, s%d, %d' % (S_W2, S_W2, WS_W2))
    I('s_mov_b32 s6, 0xaaaaaaaa'); I('s_mov_b32 s7, 0xaaaaaaaa')
    I('v_and_b32 v%d, 0x19, v%d' % (V_AT, L))
    I('v_lshrrev_b32 v102, 5, v%d' % L)
    I('v_lshl_or_b32 v%d, v102, 2, v%d' % (V_AT, V_AT))
    I('v_lshrrev_b32 v102, 1, v%d' % L)
    I('v_and_b32 v102, 2, v102')
    I('v_or_b32 v%d, v%d, v102' % (V_AT, V_AT))
    I('v_lshlrev_b32 v%d, 2, v%d' % (V_AT, V_AT))
    I('v_and_b32 v102, 2, v%d' % L)
    I('v_lshlrev_b32 v102, 30, v102')
    I('v_or_b32 v%d, v%d, v102' % (V_AT, V_AT))
    I('buffer_load_dword v%d, off, %s, 0 sc1' % (V_FLAG, srd(SRD_DBG)), tag='flag')

    X = lambda n: V_X + 16 * (n % 3)
    Z = lambda n: V_Z + 16 * (n % 2)
    NS = 42
    def yread(q):
        n, ks = divmod(q, 12)
        if n >= NS: return
        t = n % 7
        base, off = (V_YA, t * ROWP) if t < 4 else (V_YB, (t - 4) * ROWP)
        I('ds_read_b128 %s, v%d offset:%d' % (ar(A_RING + 4 * (q % 8), 4), base, off + ks * 1024), tag='y%d' % q)
    def Treg(n): return 152 if n <= 7 else 208
    for q in range(7): yread(q)
    vm = {}
    def w1f_load(eb, ks):
        def f():
            if ks % 4 == 0: I('s_add_u32 s40, s%d, %d' % (S_W1F, WS_W1 + eb * 12288 + ks * 1024))
            I('buffer_load_dwordx4 %s, v%d, %s, s40 offen offset:%d sc1' % (w1reg(eb, ks), V_L16, ws, (ks % 4) * 1024), tag='w1f%d' % eb)
        return f
    for eb, st in ((2, 4), (3, 10), (4, 21), (5, 28)):
        for ks in range(12): vm.setdefault(st + ks // 2, []).append(w1f_load(eb, ks))
    def raw_load(cb, ks, hr, dst, sreg=41):
        def f():
            if hr == 0 or True:
                I('s_add_u32 s%d, s%d, %d' % (sreg, S_W2, cb * 24576 + ks * 2048))
            I('buffer_load_dwordx4 %s, v%d, %s, s%d offen offset:%d sc1' % (vr(dst, 4), V_L16, ws, sreg, hr * 1024), tag='raw%d_%d_%d' % (cb, ks, hr))
        return f
    def raw_pair(cb, ks, d0, d1, sreg=41):
        def f():
            I('s_add_u32 s%d, s%d, %d' % (sreg, S_W2, cb * 24576 + ks * 2048))
            I('buffer_load_dwordx4 %s, v%d, %s, s%d offen sc1' % (vr(d0, 4), V_L16, ws, sreg), tag='raw%d_%d_0' % (cb, ks))
            I('buffer_load_dwordx4 %s, v%d, %s, s%d offen offset:1024 sc1' % (vr(d1, 4), V_L16, ws, sreg), tag='raw%d_%d_1' % (cb, ks))
        return f
    if cfg.w2warm:
        def warm(k):
            def f():
                if k == 0:
                    I('s_lshr_b32 s42, s2, 3'); I('s_lshl_b32 s42, s42, 2'); I('s_add_u32 s42, s42, s%d' % S_W)
                    I('s_mul_i32 s42, s42, 6144'); I('s_add_u32 s42, s42, %d' % WS_W2)
                    I('s_min_u32 s42, s42, %d' % (WS_W2 + 4 * 147456 - 6144))
                if k == 4: I('s_add_u32 s42, s42, 4096')
                I('buffer_load_dwordx4 %s, v%d, %s, s42 offen offset:%d sc1' % (vr(V_RAW, 4), V_L16, ws, (k % 4) * 1024), tag='warm')
            return f
        for k in range(6): vm.setdefault(16 + k // 2, []).append(warm(k))
    for i, ks in enumerate((6, 7, 8, 9, 10)):
        vm.setdefault(35 + i, []).append(raw_pair(0, ks, raw0_reg(ks, 0), raw0_reg(ks, 1)))

    def sq_reduce(eb):
        S = V_SQ
        for k in range(8): I('v_permlane16_swap_b32 v%d, v%d' % (S + k, S + k + 8))
        for k in range(0, 8, 2): I('v_pk_add_f32 %s, %s, %s' % (vr(S + k, 2), vr(S + k, 2), vr(S + k + 8, 2)))
        for k in range(4): I('v_add_f32_dpp v%d, v%d, v%d row_ror:8 row_mask:0xf bank_mask:0x3' % (S + k, S + k, S + k))
        for k in range(4): I('v_add_f32_dpp v%d, v%d, v%d row_ror:8 row_mask:0xf bank_mask:0xc' % (S + k, S + k + 4, S + k + 4))
        for k in range(2): I('v_add_f32_dpp v%d, v%d, v%d row_half_mirror row_mask:0xf bank_mask:0x5' % (S + k, S + k, S + k))
        for k in range(2): I('v_add_f32_dpp v%d, v%d, v%d row_half_mirror row_mask:0xf bank_mask:0xa' % (S + k, S + k + 2, S + k + 2))
        I('v_cndmask_b32 v%d, v%d, v%d, s[6:7]' % (S + 2, S, S + 1))
        I('v_cndmask_b32 v%d, v%d, v%d, s[6:7]' % (S + 3, S + 1, S))
        I('v_add_f32_dpp v%d, v%d, v%d quad_perm:[1,0,3,2] row_mask:0xf bank_mask:0xf' % (S + 2, S + 3, S + 2))
        I('v_add_f32_dpp v%d, v%d, v%d quad_perm:[2,3,0,1] row_mask:0xf bank_mask:0xf' % (S + 4, S + 2, S + 2))
        I('buffer_atomic_add_f32 v%d, v%d, %s, s%d offen offset:%d' % (S + 4, V_AT, ws, S_AT, eb * 128), tag='atom')

    def cvt(n):
        eb, t = divmod(n, 7); k, r = gdest(eb, t)
        d = r if k == 'v' else Treg(n)
        for j in range(8): I('v_cvt_pk_bf16_f32 v%d, v%d, v%d' % (d + j, X(n) + 2 * j, X(n) + 2 * j + 1))
    def moves(n):
        if n < 0 or n >= NS: return [], []
        eb, t = divmod(n, 7); k, r = gdest(eb, t); T = Treg(n)
        if k == 'a': return [(lambda j=j: I('v_accvgpr_write_b32 a%d, v%d' % (r + j, T + j))) for j in range(8)], []
        if k == 'l': return [], [(lambda f=f: I('ds_write_b128 v%d, %s offset:%d' % (V_GL, vr(T + 4 * f, 4), r * 2048 + f * 1024), tag='gw')) for f in range(2)]
        return [], []

    for n in range(NS + 2):
        eb, t = divmod(n, 7)
        a.comment('W %d' % n)
        TR = []
        if 0 <= n - 1 < NS: TR += [(lambda i=i: I('v_exp_f32 v%d, v%d' % (Z(n - 1) + i, Z(n - 1) + i))) for i in range(16)]
        if 0 <= n - 2 < NS: TR += [(lambda i=i: I('v_rcp_f32 v%d, v%d' % (Z(n - 2) + i, Z(n - 2) + i))) for i in range(16)]
        acw, dsw = moves(n - 3)
        vl = vm.get(n, [])
        if n < NS:
            if t == 0 and eb >= 2: a.wait_vm('w1f%d' % eb)
            for ks in range(12):
                q = 12 * n + ks
                if ks in cfg.ywaits: a.wait_lg('y%d' % (12 * n + cfg.ywaits[ks]))
                I('v_mfma_f32_32x32x16_bf16 %s, %s, %s, %s' % (vr(X(n), 16), w1reg(eb, ks), ar(A_RING + 4 * (q % 8), 4), '0' if ks == 0 else vr(X(n), 16)))
                yread(q + 7)
                if ks in (2, 5) and dsw: dsw.pop(0)()
                if ks in (8, 11) and vl: vl.pop(0)()
                for _ in range(2 if ks % 3 == 2 else 3):
                    if TR: TR.pop(0)()
                if ks % 3 == 2:
                    for _ in range(2):
                        if acw: acw.pop(0)()
            assert not vl
        for f in TR + acw + dsw: f()
        a.comment('P %d' % n)
        if n == 3:
            a.wait_vm('flag')
            I('v_readfirstlane_b32 s4, v%d' % V_FLAG)
            I('s_cmp_lg_u32 s4, %d' % NH)
            I('s_cbranch_scc1 L_slow1')
            a.label('L_back1')
        if 0 <= n - 1 < NS:
            for j in range(0, 16, 2): I('v_pk_add_f32 %s, %s, s[%d:%d]' % (vr(Z(n - 1) + j, 2), vr(Z(n - 1) + j, 2), S_ONE, S_ONE + 1))
        m = n - 2
        if 0 <= m < NS:
            for j in range(0, 16, 2): I('v_pk_mul_f32 %s, %s, %s' % (vr(X(m) + j, 2), vr(X(m) + j, 2), vr(Z(m) + j, 2)))
            for j in range(0, 16, 2):
                if m % 7 == 0: I('v_pk_mul_f32 %s, %s, %s' % (vr(V_SQ + j, 2), vr(X(m) + j, 2), vr(X(m) + j, 2)))
                else: I('v_pk_fma_f32 %s, %s, %s, %s' % (vr(V_SQ + j, 2), vr(X(m) + j, 2), vr(X(m) + j, 2), vr(V_SQ + j, 2)))
            if m == NS - 1: sq_reduce(5)
            cvt(m)
        if n < NS:
            for j in range(0, 16, 2): I('v_pk_fma_f32 %s, %s, %s, s[%d:%d]' % (vr(Z(n) + j, 2), vr(X(n) + j, 2), vr(X(n) + j, 2), S_AP, S_AP + 1))
            for j in range(0, 16, 2): I('v_pk_mul_f32 %s, %s, %s neg_lo:[1,0] neg_hi:[1,0]' % (vr(Z(n) + j, 2), vr(X(n) + j, 2), vr(Z(n) + j, 2)))
        if 0 <= m < NS - 1 and m % 7 == 6: sq_reduce(m // 7)
        if n in (6, 20, 34): stamp(a, cfg, 3 + (6, 20, 34).index(n)) if False else None
    for f in moves(NS - 1)[0]: f()
    stamp(a, cfg, 3)

    a.sect = 'sync'
    for ks in (11, 4, 5, 2, 3, 0, 1): raw_pair(0, ks, raw0_reg(ks, 0), raw0_reg(ks, 1))()
    I('v_lshrrev_b32 v4, 5, v%d' % L)
    I('v_and_b32 v5, 31, v%d' % L)
    I('s_movk_i32 s42, 384')
    I('s_lshl_b32 s43, s%d, 4' % S_W)
    I('v_mul_u32_u24 v%d, s42, v5' % V_XL)
    I('v_lshlrev_b32 v6, 31, v4')
    I('v_add3_u32 v%d, v%d, s43, v6' % (V_XL, V_XL))
    def xload(j):
        if j >= 42: return
        cb, t = divmod(j, 7)
        I('buffer_load_dwordx4 %s, v%d, %s, s%d offen offset:%d' % (ar(A_X + 4 * (j % 3), 4), V_XL, srd(SRD_X), S_ROW + t, cb * 64), tag='x%d' % j)
    xload(0); xload(1)
    I('v_lshlrev_b32 v7, 4, v4')
    I('s_mul_i32 s44, s%d, 768' % S_W)
    I('s_add_u32 s44, s44, %d' % WS_BIAS)
    I('v_mov_b32 v%d, v7' % L)
    V_BO = L
    def bias_load(cb, g):
        I('buffer_load_dwordx4 %s, v%d, %s, s44 offen offset:%d sc1' % (ar(A_BIAS[cb % 2] + 4 * g, 4), V_BO, ws, cb * 128 + g * 32), tag='bias%d' % cb)
    for g in range(4): bias_load(0, g)
    I('v_lshrrev_b32 v8, 4, v%d' % V_L16)
    I('v_lshrrev_b32 v9, 4, v8')
    I('v_lshlrev_b32 v9, 7, v9')
    I('v_and_b32 v10, 7, v8')
    I('v_lshl_add_u32 v9, v10, 4, v9')
    I('s_mul_i32 s45, s%d, 384' % S_W)
    I('buffer_load_dwordx4 v[0:3], v9, %s, s45 offen' % srd(SRD_GAM), tag='gam')
    a.wait_vm('atom')
    I('s_barrier')
    I('s_cmp_lg_u32 s%d, 0' % S_W)
    I('s_cbranch_scc1 L_nopoll')
    save = (list(a.vmq), list(a.lgq))
    I('s_and_b32 s46, s2, 7')
    I('s_lshl_b32 s46, s46, 8')
    I('s_add_u32 s46, s46, %d' % cnt_off)
    I('v_mov_b32 v11, 1')
    I('v_lshlrev_b32 v12, 8, v8')
    I('s_mov_b64 exec, 1')
    I('buffer_atomic_add v11, off, %s, s46 sc1' % ws)
    I('s_mov_b64 exec, 0xff')
    I('s_mov_b32 s46, %d' % cnt_off)
    I('s_mov_b32 s4, %d' % SPIN_MAX)
    a.label('L_poll')
    I('buffer_load_dword v11, v12, %s, s46 offen sc1' % ws)
    I('s_waitcnt vmcnt(0)'); a.vmq = []
    I('v_cmp_ne_u32 vcc, 28, v11')
    I('s_sub_u32 s4, s4, 1')
    I('s_cbranch_scc1 L_polled')
    I('s_cbranch_vccnz L_poll')
    a.label('L_polled')
    if cfg.marks:
        I('s_mov_b64 exec, 1')
        I('v_mov_b32 v11, s4')
        I('v_mov_b32 v12, 1')
        I('v_cmp_eq_u32 vcc, -1, v11')
        I('s_and_b64 exec, vcc, exec')
        I('buffer_atomic_add v12, off, %s, 0 offset:12 sc1' % srd(SRD_DBG))
        a.vmq = []
    I('s_mov_b64 exec, -1')
    a.label('L_nopoll')
    a.vmq, a.lgq = save
    I('s_mul_i32 s46, s%d, 4608' % S_W)
    I('s_add_u32 s46, s46, %d' % EXB)
    I('s_movk_i32 s47, 576')
    I('v_mul_u32_u24 v%d, s47, v4' % V_EW)
    I('v_lshl_add_u32 v%d, v5, 4, v%d' % (V_EW, V_EW))
    I('v_add_u32 v%d, s46, v%d' % (V_EW, V_EW))
    I('v_lshrrev_b32 v11, 3, v8')
    I('s_lshl_b32 s46, s%d, 3' % S_W)
    I('v_add_u32 v11, s46, v11')
    I('v_mul_u32_u24 v%d, s47, v10' % V_ER)
    I('v_lshl_add_u32 v%d, v11, 4, v%d' % (V_ER, V_ER))
    I('v_add_u32 v%d, %d, v%d' % (V_ER, EXB, V_ER))
    I('v_mul_u32_u24 v%d, s42, v11' % V_OUT)
    I('v_lshl_add_u32 v%d, v10, 3, v%d' % (V_OUT, V_OUT))
    I('s_lshl_b32 s46, s%d, 10' % S_W)
    I('s_add_u32 s46, s46, %d' % STB2)
    I('v_add_u32 v%d, s46, v7' % V_SA)
    I('v_add_u32 v13, s46, v%d' % V_L16)
    I('s_lshl_b32 s46, s%d, 3' % S_W)
    I('v_subrev_u32 v14, s46, v8')
    I('v_and_b32 v15, 1, v8')
    I('v_lshlrev_b32 v15, 4, v15')
    I('v_mov_b32 v16, 0x3f80')
    I('v_lshlrev_b32 v15, v15, v16')
    I('v_lshrrev_b32 v14, 1, v14')
    for d in range(4):
        I('v_cmp_eq_u32 vcc, %d, v14' % d)
        I('v_cndmask_b32 v16, 0, v15, vcc')
        I('v_accvgpr_write_b32 a%d, v16' % (A_ID + d))
    I('v_and_b32 v14, 8, v8')
    I('v_lshlrev_b32 v14, 1, v14')
    I('v_xor_b32 v14, 16, v14')
    I('v_cmp_gt_u32 s[66:67], 48, v8')
    I('v_mov_b32 v15, 0x%x' % BIG)
    I('v_cndmask_b32 v15, v15, v%d, s[66:67]' % V_L16)
    for i in range(4):
        I('v_lshlrev_b32 v%d, v14, v%d' % (i, i))
        I('v_and_b32 v%d, 0xffff0000, v%d' % (i, i))
    I('s_mul_i32 s46, s%d, 768' % S_W)
    I('s_add_u32 s46, s46, %d' % WS_SUM)
    I('s_mov_b32 s48, 0x%x' % f2u(1.0 / (ALPHA * ALPHA)))
    I('s_lshl_b32 s49, s%d, 2' % S_W)
    I('v_mov_b32 v14, s49')
    I('v_mov_b32 v12, 0x%x' % f2u(1e-6))
    I('s_barrier')
    stamp(a, cfg, 4)
    SB = 4
    regs = [16, 20, 24, 28, 32, 36, 4, 8]
    for r in range(cfg.R):
        if r and r % 2 == 0: I('s_add_u32 s46, s46, 6144')
        I('buffer_load_dwordx4 %s, v15, %s, s46 offen offset:%d sc1' % (vr(regs[r], 4), ws, (r % 2) * 3072), tag='sum')
    def padd(d, s_):
        for k in (0, 2): I('v_pk_add_f32 %s, %s, %s' % (vr(d + k, 2), vr(d + k, 2), vr(s_ + k, 2)))
    a.wait_vm('sum')
    padd(16, 20); padd(24, 28); padd(32, 36); padd(4, 8); padd(16, 24); padd(32, 4); padd(16, 32)
    for i in range(4): I('v_fma_f32 v%d, v%d, s48, v12' % (16 + i, 16 + i))
    for i in range(4): I('v_sqrt_f32 v%d, v%d' % (16 + i, 16 + i))
    I('v_add_f32 v20, v16, v17')
    I('v_add_f32 v21, v18, v19')
    I('v_add_f32 v20, v20, v21')
    I('v_cndmask_b32 v20, 0, v20, s[66:67]')
    for i in range(4): I('v_mul_f32 v%d, v%d, v%d' % (i, i, 16 + i)) if i < 2 else None
    I('v_add_f32_dpp v20, v20, v20 quad_perm:[1,0,3,2] row_mask:0xf bank_mask:0xf')
    for i in range(2, 4): I('v_mul_f32 v%d, v%d, v%d' % (i, i, 16 + i))
    I('v_add_f32_dpp v20, v20, v20 quad_perm:[2,3,0,1] row_mask:0xf bank_mask:0xf')
    I('v_add_f32_dpp v20, v20, v20 row_half_mirror row_mask:0xf bank_mask:0xf')
    I('v_add_f32_dpp v20, v20, v20 row_ror:8 row_mask:0xf bank_mask:0xf')
    I('v_mov_b32 v21, v20')
    I('v_permlane16_swap_b32 v20, v21')
    I('v_add_f32 v20, v20, v21')
    I('v_mov_b32 v21, v20')
    I('v_permlane32_swap_b32 v20, v21')
    I('v_add_f32 v20, v20, v21')
    I('ds_write_b32 v14, v20')
    a.wait_lg(n=0)
    I('s_barrier')
    I('v_mov_b32 v14, 0')
    I('ds_read_b128 v[20:23], v14')
    I('v_add_f32 v20, v20, v21')
    I('v_add_f32 v22, v22, v23')
    I('v_add_f32 v20, v20, v22')
    I('v_fma_f32 v20, v20, 0x%x, v12' % f2u(1.0 / 768)) if False else None
    I('v_mov_b32 v21, 0x%x' % f2u(1.0 / 768))
    I('v_fma_f32 v20, v20, v21, v12')
    I('v_rcp_f32 v20, v20')
    I('v_mov_b32 v21, 0x%x' % f2u(1.0 / ALPHA))
    I('v_mul_f32 v20, v20, v21')
    for i in range(4): I('v_fma_f32 v%d, v%d, v20, v21' % (i, i))
    I('ds_write_b128 v13, v[0:3]', tag='sw')
    a.wait_lg(n=0)
    stamp(a, cfg, 5)

    a.sect = 'p2'
    F = lambda cb: FA if cb % 2 == 0 else FB
    scnt = [0]
    def sread(ks, hr):
        slot = scnt[0] % 2; scnt[0] += 1
        I('ds_read_b128 %s, v%d offset:%d' % (vr(V_S + 4 * slot, 4), V_SA, ks * 64 + hr * 32), tag='s')
        return V_S + 4 * slot
    def prep(raw, sreg, dst, rev=False):
        for i in range(4): I('v_mul_f32 v%d, v%d, v%d' % (raw + i, raw + i, sreg + i))
        for d in range(2): I('v_cvt_pk_bf16_f32 v%d, v%d, v%d' % (dst + d, raw + 2 * d, raw + 2 * d + 1))
    def greg(ks, t):
        eb, half = divmod(ks, 2); k, r = gdest(eb, t)
        if k == 'l': return ar(A_GL + 4 * half, 4)
        return (vr if k == 'v' else ar)(r + 4 * half, 4)
    def gread(idx, f):
        I('ds_read_b128 %s, v%d offset:%d' % (ar(A_GL + 4 * f, 4), V_GL, idx * 2048 + f * 1024), tag='gl')
    def exw(j, g):
        I('ds_write_b128 v%d, %s offset:%d' % (V_EW, ar(A_ACC[j % 2] + 4 * g, 4), (j % 2) * 18432 + g * 1152), tag='exw')
    def exr(j, sw):
        I('ds_read_b128 %s, v%d offset:%d' % (vr(V_TMP + 4 * sw, 4), V_ER, (j % 2) * 18432 + sw * 4608), tag='exr')
    def fin(j):
        cb, t = divmod(j, 7); T = V_TMP
        Fs = []
        for (d, s_) in ((0, 4), (8, 12), (0, 8)):
            for i in range(4): Fs.append(lambda d=d, s_=s_, i=i: I('v_add_f32 v%d, v%d, v%d' % (T + d + i, T + d + i, T + s_ + i)))
        Fs.append(lambda: I('v_cvt_pk_bf16_f32 v%d, v%d, v%d' % (T, T, T + 1)))
        Fs.append(lambda: I('v_cvt_pk_bf16_f32 v%d, v%d, v%d' % (T + 1, T + 2, T + 3)))
        Fs.append(lambda: I('buffer_store_dwordx2 %s, v%d, %s, s%d offen offset:%d%s' % (vr(T, 2), V_OUT, srd(SRD_OUT), S_ROW + t, cb * 64, cfg.out_flags), tag='st'))
        return Fs
    units = {}
    for cb in range(1, 6): units[cb] = [(ks, hr) for ks in KORD for hr in range(2)]
    allu = [(cb, ks, hr) for cb in range(1, 6) for (ks, hr) in units[cb]]
    def ublock(i):
        cb, k = divmod(i, 24)
        if cb == 0: return 1 + k // 4
        return cb * 7 + (k * 7) // 24
    sched = {}
    for i in range(len(allu)): sched.setdefault(ublock(i), []).append(i)
    ld_next = [0]
    def rawissue(upto):
        while ld_next[0] < min(upto, len(allu)):
            i = ld_next[0]; cb, ks, hr = allu[i]
            if hr == 0: I('s_add_u32 s41, s%d, %d' % (S_W2, cb * 24576 + ks * 2048))
            I('buffer_load_dwordx4 %s, v%d, %s, s41 offen offset:%d sc1' % (vr(V_RAW + 4 * (i % 6), 4), V_L16, ws, hr * 1024), tag='raw')
            ld_next[0] += 1
    for j in range(42):
        cb, t = divmod(j, 7)
        a.comment('block %d' % j)
        acc = ar(A_ACC[j % 2], 16)
        order = list(KORD)
        if t == 0: order = [11, 6, 7, 8, 9, 2, 3, 10, 4, 5, 0, 1]
        RES = 6 if t else 8
        mf = [('k', ks) for ks in order]; mf.insert(RES, ('x', 0))
        ds = {k: [] for k in range(13)}; post = {k: [] for k in range(13)}
        if t == 0:
            ds[0].append(lambda: gread(7, 0)); ds[1].append(lambda: gread(7, 1))
            ds[6].append(lambda: gread(0, 0)); ds[7].append(lambda: gread(0, 1))
        else:
            ds[0].append(lambda: gread(t, 0)); ds[1].append(lambda: gread(t, 1))
        if j >= 2:
            fl = fin(j - 2)
            post[0] += fl[0:4]; post[1] += fl[4:8]; post[2] += fl[8:]
        if j >= 1:
            for g in range(4): ds[3 + g].append(lambda g=g: exw(j - 1, g))
            def bar():
                a.wait_lg('exw'); I('s_barrier')
            post[8].append(bar)
            for sw in range(4): ds[9 + sw].append(lambda sw=sw: exr(j - 1, sw))
        post[RES].append(lambda: xload(j + 2))
        if t == 3 and cb < 5:
            for g in range(4): post[3 + g].append(lambda g=g: bias_load(cb + 1, g))
        if j == 0:
            pend = []
            seqk = [ks for (k, ks) in mf if k == 'k']
            sr_ = {}
            def both(ks):
                sr_[(ks, 0)] = sread(ks, 0); sr_[(ks, 1)] = sread(ks, 1)
            both(seqk[0])
            pos = 0
            for (k, ks) in mf:
                if k == 'k':
                    hrs = (1, 0) if ks == 11 else (0, 1)
                    if ks == 11:
                        for hr in (0, 1):
                            for i in range(4): I('v_mul_f32 v%d, v%d, v%d' % (raw0_reg(ks, hr) + i, raw0_reg(ks, hr) + i, sr_[(ks, hr)] + i))
                        nx = seqk[seqk.index(ks) + 1]; both(nx)
                        for d in (3, 2, 1, 0): I('v_cvt_pk_bf16_f32 v%d, v%d, v%d' % (FA + 44 + d, FA + 40 + 2 * d, FA + 41 + 2 * d))
                    else:
                        for hr in (0, 1):
                            for i in range(4): I('v_mul_f32 v%d, v%d, v%d' % (raw0_reg(ks, hr) + i, raw0_reg(ks, hr) + i, sr_[(ks, hr)] + i))
                        if seqk.index(ks) + 1 < 12: both(seqk[seqk.index(ks) + 1])
                        for hr in (0, 1):
                            for d in range(2): I('v_cvt_pk_bf16_f32 v%d, v%d, v%d' % (FA + 4 * ks + 2 * hr + d, raw0_reg(ks, hr) + 2 * d, raw0_reg(ks, hr) + 2 * d + 1))
                    I('v_mfma_f32_32x32x16_bf16 %s, %s, %s, %s' % (acc, vr(FA + 4 * ks, 4), greg(ks, t), ar(A_BIAS[0], 16) if pos == 0 else acc))
                    if ks == 8: pass
                else:
                    I('v_mfma_f32_32x32x16_bf16 %s, %s, %s, %s' % (acc, ar(A_ID, 4), ar(A_X + 4 * (j % 3), 4), acc))
                for f in ds[pos] + post[pos]: f()
                if pos == 4: rawissue(3)
                if pos == 8: rawissue(6)
                pos += 1
            continue
        us = sched.get(j, [])
        if len(us) == 4: uslots, sslots, sregs = [7, 8, 10, 11], [2, 2, 7, 8], [V_S, V_TMP + 12, V_S + 4, V_S]
        else: uslots, sslots, sregs = [7, 10, 11], [2, 7, 8], [V_S, V_S + 4, V_S]
        for i, u in enumerate(us):
            cbn, ks, hr = allu[u]
            ds[sslots[i]].append(lambda ks=ks, hr=hr, r=sregs[i]: I('ds_read_b128 %s, v%d offset:%d' % (vr(r, 4), V_SA, ks * 64 + hr * 32), tag='s'))
            def pr(u=u, cbn=cbn, ks=ks, hr=hr, r=sregs[i]):
                prep(V_RAW + 4 * (u % 6), r, F(cbn) + 4 * ks + 2 * hr)
                rawissue(u + 7)
            post[uslots[i]].insert(0, pr)
        for pos, (k, ks) in enumerate(mf):
            if k == 'k':
                I('v_mfma_f32_32x32x16_bf16 %s, %s, %s, %s' % (acc, vr(F(cb) + 4 * ks, 4), greg(ks, t), ar(A_BIAS[cb % 2], 16) if pos == 0 else acc))
            else:
                I('v_mfma_f32_32x32x16_bf16 %s, %s, %s, %s' % (acc, ar(A_ID, 4), ar(A_X + 4 * (j % 3), 4), acc))
            for f in ds[pos] + post[pos]: f()
    for f in fin(40): f()
    for g in range(4): exw(41, g)
    a.wait_lg('exw'); I('s_barrier')
    for sw in range(4): exr(41, sw)
    for f in fin(41): f()
    stamp(a, cfg, 6)
    if cfg.stamps: gen_stamps_out(a, cfg, 7)
    I('s_endpgm')
    a.forget()
    a.label('L_slow1')
    I('s_mov_b32 s5, %d' % SPIN_MAX)
    if cfg.marks:
        I('s_mov_b64 exec, 1')
        I('v_mov_b32 v%d, 1' % V_FLAG)
        I('buffer_atomic_add v%d, off, %s, 0 offset:4 sc1' % (V_FLAG, srd(SRD_DBG)))
        I('s_waitcnt vmcnt(0)'); a.vmq = []
        I('s_mov_b64 exec, -1')
    a.label('L_slow1b')
    I('s_sleep 2')
    I('buffer_load_dword v%d, off, %s, 0 sc1' % (V_FLAG, srd(SRD_DBG)))
    I('s_waitcnt vmcnt(0)'); a.vmq = []
    I('v_readfirstlane_b32 s4, v%d' % V_FLAG)
    I('s_sub_u32 s5, s5, 1')
    I('s_cbranch_scc1 %s' % ('L_slow1c' if cfg.marks else 'L_back1'))
    I('s_cmp_lg_u32 s4, %d' % NH)
    I('s_cbranch_scc1 L_slow1b')
    I('s_branch L_back1')
    if cfg.marks:
        a.label('L_slow1c')
        I('s_mov_b64 exec, 1')
        I('v_mov_b32 v%d, 1' % V_FLAG)
        I('buffer_atomic_add v%d, off, %s, 0 offset:8 sc1' % (V_FLAG, srd(SRD_DBG)))
        I('s_waitcnt vmcnt(0)'); a.vmq = []
        I('s_mov_b64 exec, -1')
        I('s_branch L_back1')
```

```python
import sys, math, struct
from asmlib import *

NAME = 'standalone__modern_conv_block_convnext_v2__vision'
def f2u(x): return struct.unpack('<I', struct.pack('<f', x))[0]

class Cfg:
    stop = None
    stamps = False
    R = 8
    out_flags = ''
    prefetch_code = True
    w2warm = True
    marks = False
    ywaits = {0: 6, 7: 9, 10: 11}

ALPHA = 0.1029432397 ** (1.0 / 3.0)
APRIME = 2.302208198 / ALPHA
NMAIN = 224
NH = 29
XBYTES = 224 * 224 * 384
WS_W1 = 0
WS_W2 = 0x48000
WS_BIAS = 0xD8000
WS_SUM = 0xD9000
WS_DUMP = 0x200000
WS_STAMP = 0x100000
WS_SIZE = 268435456
HB = 2048
ROWP = 13056
GB = HB + 7 * ROWP
EXB = 2048
STB = 40960
BTB = 44032
LDS_BYTES = 163840
BIG = 0x80000000

S_W = 3
SRD_X, SRD_DW, SRD_W1, SRD_WS, SRD_OUT, SRD_GAM, SRD_DBG = 8, 12, 16, 20, 24, 28, 32
S_R0, S_C0, S_XB = 36, 37, 38
S_T0 = 40
S_ONE, S_AP = 60, 62
S_PLO, S_PHI = 64, 65
S_EX = 66
S_ROW, S_AT, S_W1F, S_W2 = 70, 77, 78, 79
S_STAMP = 80

V_X, V_Z, V_SQ = 0, 48, 80
V_LANE, V_YA, V_YB, V_AT, V_L16, V_GL = 96, 97, 98, 99, 100, 101
V_W10, V_W11 = 160, 208
V_SPARE = 159
A_RING = 0
A_W1A, A_W1B = 32, 80
A_G = 128

def srd(b): return 's[%d:%d]' % (b, b + 3)

def stamp(a, cfg, idx):
    if cfg.stamps:
        a.I('s_memtime s[%d:%d]' % (S_STAMP + 2 * idx, S_STAMP + 2 * idx + 1))

def gen_entry(a, cfg):
    I = a.I
    a.sect = 'entry'
    I('s_load_dwordx2 s[8:9], s[0:1], 0')
    I('s_load_dwordx2 s[12:13], s[0:1], 8')
    I('s_load_dwordx2 s[16:17], s[0:1], 16')
    I('s_load_dwordx2 s[20:21], s[0:1], 64')
    I('s_load_dwordx2 s[32:33], s[0:1], 56')
    stamp(a, cfg, 0)
    I('v_lshrrev_b32 v1, 6, v0')
    I('v_and_b32 v%d, 63, v0' % V_LANE)
    I('v_readfirstlane_b32 s%d, v1' % S_W)
    I('s_mov_b32 s18, %d' % (192 * 768 * 2))
    I('s_mov_b32 s19, 0x20000')
    I('s_mov_b32 s22, %d' % WS_SIZE)
    I('s_mov_b32 s23, 0x20000')
    I('s_mov_b32 s34, 256')
    I('s_mov_b32 s35, 0x20000')
    I('s_cmp_ge_u32 s2, %d' % NMAIN)
    I('s_cbranch_scc1 L_helper')

def gen_prologue(a, cfg):
    I = a.I
    a.sect = 'pro'
    L = V_LANE
    I('s_mov_b32 s10, %d' % XBYTES)
    I('s_mov_b32 s11, 0x20000')
    I('s_mov_b32 s14, 3456')
    I('s_mov_b32 s15, 0x20000')
    I('v_and_b32 v20, 15, v%d' % L)
    I('v_bfe_u32 v21, v%d, 4, 1' % L)
    I('v_lshlrev_b32 v22, 1, v20')
    I('v_mad_u32_u24 v23, v21, 384, v22')
    a.ins.pop()
    I('s_movk_i32 s40, 384')
    I('s_movk_i32 s41, 1152')
    I('v_mad_u32_u24 v23, v21, s40, v22')
    I('v_mad_u32_u24 v22, v21, s41, v22')
    I('s_and_b32 s42, s2, 7')
    I('s_lshr_b32 s43, s2, 3')
    I('s_mul_i32 s44, s43, 37')
    I('s_lshr_b32 s44, s44, 8')
    I('s_mul_i32 s45, s44, 7')
    I('s_sub_u32 s45, s43, s45')
    I('s_lshl_b32 s42, s42, 2')
    I('s_add_u32 s42, s42, s44')
    I('s_mul_i32 s%d, s42, 7' % S_R0)
    I('s_lshl_b32 s%d, s45, 5' % S_C0)
    I('s_mul_i32 s46, s%d, 96' % S_W)
    for pi in range(5):
        for cg in range(3):
            if pi < 3: va, off = 22, pi * 384 + cg * 32
            else: va, off = 23, (6 if pi == 3 else 8) * 384 + cg * 32
            I('buffer_load_ushort v%d, v%d, %s, s46 offen offset:%d' % (pi * 3 + cg, va, srd(SRD_DW), off), tag='dw')
    I('s_lshl_b32 s47, s%d, 3' % S_W)
    I('s_add_u32 s48, s47, 1')
    I('s_movk_i32 s49, 171')
    for j in range(3):
        I('v_add_u32 v24, %d, v%d' % (64 * j, L))
        I('v_mul_u32_u24 v25, s49, v24')
        I('v_lshrrev_b32 v25, 12, v25')
        I('v_mul_u32_u24 v26, 24, v25')
        I('v_sub_u32 v26, v24, v26')
        I('v_add_u32 v27, s48, v25')
        I('v_bfe_u32 v27, v27, 1, 3')
        I('v_xor_b32 v26, v26, v27')
        I('v_add_u32 v25, s47, v25')
        I('v_mul_u32_u24 v25, s40, v25')
        I('v_lshl_add_u32 v25, v26, 4, v25')
        I('v_subrev_u32 v%d, %d, v25' % (63 + j, 1024 * j))
    I('s_mul_i32 s50, s%d, 224' % S_R0)
    I('s_add_u32 s50, s50, s%d' % S_C0)
    I('s_sub_u32 s50, s50, 224')
    I('s_mul_i32 s%d, s50, 384' % S_XB)
    I('s_mul_i32 s51, s%d, 3072' % S_W)
    I('s_add_u32 s51, s51, %d' % (HB + 384))
    def row(hr):
        if hr == 0:
            I('s_cmp_eq_u32 s%d, 0' % S_R0)
            I('s_cselect_b32 s52, 0x%x, s%d' % (0x7fff0000, S_XB))
            I('s_mov_b32 m0, s51')
        else:
            I('s_add_u32 s52, s%d, %d' % (S_XB, hr * 224 * 384))
            I('s_add_u32 m0, s51, %d' % (hr * ROWP))
        for j in range(3):
            I('buffer_load_dwordx4 v%d, %s, s52 offen offset:%d lds' % (63 + j, srd(SRD_X), 1024 * j), tag='row%d' % hr)
    for hr in range(3): row(hr)
    I('v_cmp_le_u32 vcc, 24, v%d' % L)
    I('v_cndmask_b32 v24, 0, 1, vcc')
    I('v_mul_u32_u24 v25, 24, v24')
    I('v_sub_u32 v25, v%d, v25' % L)
    I('v_lshlrev_b32 v25, 4, v25')
    I('s_mov_b32 exec_hi, 0xffff')
    for i in range(3):
        I('s_add_u32 s53, s%d, %d' % (S_W, 4 * i))
        I('s_mul_i32 s54, s53, %d' % (224 * 384))
        I('s_add_u32 s54, s54, s%d' % S_XB)
        I('s_add_u32 s54, s54, %d' % ((-224 + 32) * 384 & 0xffffffff))
        I('s_add_u32 s55, s54, %d' % (191 * 384))
        I('s_add_u32 s56, s%d, s53' % S_R0)
        I('s_sub_u32 s57, s56, 2')
        I('s_cmp_lt_u32 s57, 224'); I('s_cselect_b32 s54, s54, 0x%x' % BIG)
        I('s_sub_u32 s57, s53, 1')
        I('s_cmp_lt_u32 s57, 9'); I('s_cselect_b32 s54, s54, 0x%x' % BIG)
        I('s_cmp_lt_u32 s%d, 192' % S_C0); I('s_cselect_b32 s54, s54, 0x%x' % BIG)
        I('s_sub_u32 s57, s56, 1')
        I('s_cmp_lt_u32 s57, 224'); I('s_cselect_b32 s55, s55, 0x%x' % BIG)
        I('s_cmp_lt_u32 s53, 9'); I('s_cselect_b32 s55, s55, 0x%x' % BIG)
        I('s_cmp_gt_u32 s%d, 0' % S_C0); I('s_cselect_b32 s55, s55, 0x%x' % BIG)
        I('s_sub_u32 s55, s55, s54')
        I('v_mul_lo_u32 v26, v24, s55')
        I('v_add3_u32 v26, v26, s54, v25')
        I('s_mul_i32 s53, s53, %d' % ROWP)
        I('s_add_u32 m0, s53, %d' % (HB - 384))
        I('buffer_load_dwordx4 v26, %s, 0 offen lds' % srd(SRD_X), tag='edge')
    I('s_mov_b32 exec_hi, -1')
    for hr in range(3, 6): row(hr)
    I('v_lshrrev_b32 v24, 5, v%d' % L)
    I('v_and_b32 v25, 31, v%d' % L)
    I('v_lshlrev_b32 v25, 2, v25')
    I('s_movk_i32 s53, %d' % (8 * 1536))
    I('v_mad_u32_u24 v66, v24, s53, v25')
    I('v_add_u32 v67, %d, v66' % (3 * 1536))
    I('v_add_u32 v68, %d, v66' % (6 * 1536))
    I('s_mul_i32 s58, s%d, 384' % S_W)
    w1q = []
    def mk(ks, i):
        def f():
            if i == 0 and ks > 0: I('s_add_u32 s58, s58, 24576')
            k = ks * 4 + i // 2
            if i % 2 == 0: dst = V_W10 + k + 1 if k < 47 else V_SPARE
            else: dst = V_W11 + k
            I('buffer_load_dword v%d, v%d, %s, s58 offen offset:%d' % (dst, 66 + i // 3, srd(SRD_W1), (i % 3) * 1536), tag='w1')
        return f
    for ks in range(12):
        for i in range(8): w1q.append(mk(ks, i))
    def w1issue(n):
        for _ in range(n):
            if w1q: w1q.pop(0)()
    permq = list(range(48))
    def perm1():
        k = permq.pop(0)
        A = V_W10 + k + 1 if k < 47 else V_SPARE
        B = V_W11 + k
        I('v_perm_b32 v%d, v%d, v%d, s%d' % (V_W10 + k, B, A, S_PLO))
        I('v_perm_b32 v%d, v%d, v%d, s%d' % (B, B, A, S_PHI))
    w1issue(24)
    I('s_mov_b32 s%d, 0x05040100' % S_PLO)
    I('s_mov_b32 s%d, 0x07060302' % S_PHI)
    I('s_load_dwordx2 s[24:25], s[0:1], 48')
    I('s_load_dwordx2 s[28:29], s[0:1], 32')
    I('s_mov_b32 s26, %d' % XBYTES); I('s_mov_b32 s27, 0x20000')
    I('s_mov_b32 s30, 1536'); I('s_mov_b32 s31, 0x20000')
    I('s_mov_b32 s%d, 1.0' % S_ONE); I('s_mov_b32 s%d, 1.0' % (S_ONE + 1))
    I('s_mov_b32 s%d, 0x%x' % (S_AP, f2u(APRIME))); I('s_mov_b32 s%d, 0x%x' % (S_AP + 1, f2u(APRIME)))
    I('v_lshrrev_b32 v24, 5, v%d' % L)
    I('s_mul_i32 s53, s%d, 6' % S_W)
    I('v_add_u32 v24, s53, v24')
    I('s_movk_i32 s54, %d' % ROWP)
    I('v_mul_u32_u24 v28, s54, v21')
    for pi in range(5):
        if pi < 3: I('v_add_u32 v25, %d, v20' % pi)
        elif pi == 3: I('v_add_u32 v25, v20, v21')
        else: I('v_add_u32 v25, 2, v20')
        I('v_bfe_u32 v26, v25, 1, 3')
        I('v_mul_u32_u24 v25, s40, v25')
        if pi < 3: I('v_add3_u32 v25, v25, v28, %s' % 's59' if False else 'v_add_u32 v25, v25, v28')
        I('v_add_u32 v25, %d, v25' % (HB + (2 * ROWP if pi >= 3 else 0)))
        for cg in range(3):
            I('v_add_u32 v27, %d, v24' % (2 * cg))
            I('v_xor_b32 v27, v27, v26')
            I('v_lshl_add_u32 v%d, v27, 4, v25' % (48 + pi * 3 + cg))
    I('v_lshrrev_b32 v25, 5, v%d' % L)
    I('v_lshlrev_b32 v25, 9, v25')
    I('v_lshl_add_u32 v25, v20, 4, v25')
    I('v_lshl_add_u32 v25, v21, 3, v25')
    I('s_mul_i32 s53, s%d, 3072' % S_W)
    I('s_add_u32 s53, s53, %d' % HB)
    I('v_add_u32 v69, s53, v25')
    I('v_lshlrev_b32 v%d, 4, v%d' % (V_L16, L))
    I('s_lshl_b32 s53, s%d, 2' % S_W)
    I('v_add_u32 v70, s53, v%d' % V_L16)
    I('v_add_u32 v%d, %d, v%d' % (V_YA, HB, V_L16))
    I('v_add_u32 v%d, %d, v%d' % (V_YB, HB + 4 * ROWP, V_L16))
    I('s_lshl_b32 s53, s%d, 14' % S_W)
    I('s_add_u32 s53, s53, %d' % GB)
    I('v_add_u32 v%d, s53, v%d' % (V_GL, V_L16))
    I('v_and_b32 v25, 1, v20')
    I('v_lshlrev_b32 v25, 4, v25')
    I('v_mov_b32 v26, 0xffff')
    I('v_lshlrev_b32 v25, v25, v26')
    I('v_lshrrev_b32 v26, 5, v%d' % L)
    I('v_lshlrev_b32 v26, 2, v26')
    I('v_lshrrev_b32 v27, 1, v20')
    I('v_sub_u32 v26, v27, v26')
    for r in range(4):
        I('v_cmp_eq_u32 vcc, %d, v26' % r)
        I('v_cndmask_b32 v%d, 0, v25, vcc' % (16 + r))
    A_CA = 32
    for f in range(15):
        I('v_lshl_or_b32 v%d, v%d, 16, v%d' % (f, f, f))
        for r in range(4):
            I('v_and_b32 v%d, v%d, v%d' % (28 + r, f, 16 + r))
        for r in range(4):
            I('v_accvgpr_write_b32 a%d, v%d' % (A_CA + 4 * f + r, 28 + r))
    for hr in range(6, 9): row(hr)
    w1issue(9)
    stamp(a, cfg, 1)

    ACC = [0, 24]
    ring = [0]
    NR = 8
    VB = lambda pi, cg: 48 + pi * 3 + cg
    def bread(t, pxg, cg, pi):
        slot = ring[0] % NR; ring[0] += 1
        tt = t if t < 5 else t - 5
        I('ds_read_b128 a[%d:%d], v%d offset:%d' % (A_RING + 4 * slot, A_RING + 4 * slot + 3, VB(pi, cg), tt * ROWP + pxg * 6144), tag='cb')
        return slot
    seq = [(pxg, cg, pi) for pxg in range(2) for cg in range(3) for pi in range(5)]
    INV = 1.0 / 192
    def ln_finish(t):
        acc = ACC[t % 2]; buf = (t % 2) * 1024
        F = []
        F.append(lambda: I('ds_read_b128 v[76:79], v%d offset:%d' % (V_L16, buf)))
        F.append(lambda: I('v_add_f32 v76, v76, v77'))
        F.append(lambda: I('v_add_f32 v78, v78, v79'))
        F.append(lambda: I('v_add_f32 v76, v76, v78'))
        F.append(lambda: I('v_mov_b32 v77, v76'))
        F.append(lambda: I('v_permlane16_swap_b32 v76, v77'))
        F.append(lambda: I('v_mul_f32 v76, 0x%x, v76' % f2u(INV)))
        F.append(lambda: I('v_mul_f32 v78, v76, v76'))
        F.append(lambda: I('v_fma_f32 v77, v77, s59, -v78'))
        F.append(lambda: I('v_max_f32 v77, 0, v77'))
        F.append(lambda: I('v_add_f32 v77, 0x%x, v77' % f2u(1e-5)))
        F.append(lambda: I('v_rsq_f32 v77, v77'))
        F.append(lambda: I('v_mul_f32 v80, 0x%x, v77' % f2u(ALPHA)))
        F.append(lambda: I('v_mul_f32 v82, v76, v80'))
        F.append(lambda: I('v_mov_b32 v81, v80'))
        F.append(lambda: I('v_mov_b32 v83, v82'))
        F.append(lambda: I('v_permlane32_swap_b32 v80, v81'))
        F.append(lambda: I('v_permlane32_swap_b32 v82, v83'))
        for pxg in range(2):
            for cg in range(3):
                b = acc + (pxg * 3 + cg) * 4
                for i in range(4):
                    F.append(lambda b=b, i=i, pxg=pxg: I('v_fma_f32 v%d, v%d, v%d, -v%d' % (b + i, b + i, 80 + pxg, 82 + pxg)))
                F.append(lambda b=b: I('v_cvt_pk_bf16_f32 v%d, v%d, v%d' % (b, b, b + 1)))
                F.append(lambda b=b: I('v_cvt_pk_bf16_f32 v%d, v%d, v%d' % (b + 1, b + 2, b + 3)))
                tt = t if t < 5 else t - 5
                F.append(lambda b=b, tt=tt, cg=cg, pxg=pxg: I('ds_write_b64 v69, v[%d:%d] offset:%d' % (b, b + 1, tt * ROWP + cg * 1024 + pxg * 256), tag='yw'))
        return F
    def psum(t, pxg, cg):
        acc = ACC[t % 2]; b = acc + (pxg * 3 + cg) * 4
        sa, sb = 72 + 2 * pxg, 73 + 2 * pxg
        F = []
        for i in range(4):
            if cg == 0 and i == 0:
                F.append(lambda: I('v_add_f32 v%d, v%d, v%d' % (sa, b, b + 1)))
                F.append(lambda: I('v_mul_f32 v%d, v%d, v%d' % (sb, b, b)))
            else:
                if not (cg == 0 and i == 1):
                    F.append(lambda i=i: I('v_add_f32 v%d, v%d, v%d' % (sa, sa, b + i)))
                F.append(lambda i=i: I('v_fmac_f32 v%d, v%d, v%d' % (sb, b + i, b + i)))
        return F
    def stats_out(t):
        buf = (t % 2) * 1024
        I('v_permlane32_swap_b32 v72, v74')
        I('v_permlane32_swap_b32 v73, v75')
        I('v_add_f32 v72, v72, v74')
        I('v_add_f32 v73, v73, v75')
        I('v_permlane16_swap_b32 v72, v73')
        I('v_add_f32 v72, v72, v73')
        I('ds_write_b32 v70, v72 offset:%d' % buf, tag='st')
    I('s_mov_b32 s59, 0x%x' % f2u(INV))
    w1plan = {0: 12, 1: 3, 2: 3, 3: 27, 4: 3, 5: 3, 6: 99}
    permplan = {3: 12, 6: 12}
    PRE = 3
    for t in range(7):
        a.comment('conv row %d' % t)
        if t == 5:
            for r in range(48, 63): I('v_add_u32 v%d, %d, v%d' % (r, 5 * ROWP, r))
        slots = []
        if t > 0:
            for k in range(PRE): slots.append(bread(t, *seq[k]))
        a.wait_both(vmtags=['row%d' % (t + 2), 'edge'] if t == 0 else ['row%d' % (t + 2)], lgtags=['st'])
        I('s_barrier')
        fill = ln_finish(t - 1) if t > 0 else []
        if t == 6: fill.insert(18, lambda: I('v_add_u32 v69, %d, v69' % (5 * ROWP)))
        for _ in range(w1plan.get(t, 0)):
            if w1q: fill.append(w1q.pop(0))
        for _ in range(permplan.get(t, 0)): fill.append(perm1)
        while len(slots) < 6: slots.append(bread(t, *seq[len(slots)]))
        nfill = len(fill)
        per = max(1, math.ceil((nfill + 30) / 28.0))
        for k, (pxg, cg, pi) in enumerate(seq):
            d = ACC[t % 2] + (pxg * 3 + cg) * 4
            s_ = slots[k]
            c = '0' if pi == 0 else 'v[%d:%d]' % (d, d + 3)
            I('v_mfma_f32_16x16x32_bf16 v[%d:%d], a[%d:%d], a[%d:%d], %s' % (d, d + 3, A_CA + 4 * (pi * 3 + cg), A_CA + 4 * (pi * 3 + cg) + 3, A_RING + 4 * s_, A_RING + 4 * s_ + 3, c))
            if len(slots) < 30: slots.append(bread(t, *seq[len(slots)]))
            if pi == 2 and k >= 5:
                pp, pc, _ = seq[k - 5]
                fill += psum(t, pp, pc)
            for _ in range(per):
                if fill: fill.pop(0)()
        while fill: fill.pop(0)()
        for f in psum(t, 1, 2): f()
        stats_out(t)
    a.wait_lg('st')
    I('s_barrier')
    for f in ln_finish(6): f()
    while permq: perm1()
    a.wait_lg(n=0)
    I('s_barrier')
    stamp(a, cfg, 2)

def gen_dump_y(a):
    I = a.I
    I('s_mul_i32 s40, s2, 86016')
    I('s_add_u32 s40, s40, %d' % WS_DUMP)
    I('s_mul_i32 s41, s%d, 3072' % S_W)
    I('s_add_u32 s40, s40, s41')
    I('s_add_u32 s41, s41, %d' % HB)
    I('v_add_u32 v1, s41, v%d' % V_L16)
    for t in range(7):
        for j in range(3):
            I('ds_read_b128 v[4:7], v1 offset:%d' % (j * 1024))
            I('buffer_store_dwordx4 v[4:7], v%d, %s, s40 offen offset:%d' % (V_L16, srd(SRD_WS), j * 1024))
            a.wait_vm(n=0)
        I('v_add_u32 v1, %d, v1' % ROWP)
        I('s_add_u32 s40, s40, 12288')
    I('s_mul_i32 s40, s%d, 24576' % S_W)
    I('s_add_u32 s40, s40, %d' % (WS_DUMP + 0x1400000))
    I('s_cmp_lg_u32 s2, 0')
    I('s_cbranch_scc1 L_end')
    for k in range(24):
        I('buffer_store_dwordx4 v[%d:%d], v%d, %s, s40 offen' % (V_W10 + 4 * k, V_W10 + 4 * k + 3, V_L16, srd(SRD_WS)))
        I('s_add_u32 s40, s40, 1024')

def gen_helper(a, cfg):
    I = a.I
    a.sect = 'helper'
    a.forget()
    a.label('L_helper')
    L = V_LANE
    I('s_cmp_ge_u32 s2, %d' % (NMAIN + NH))
    I('s_cbranch_scc1 L_end')
    I('s_load_dwordx2 s[24:25], s[0:1], 24')
    I('s_load_dwordx2 s[44:45], s[0:1], 40')
    I('s_mov_b32 s26, %d' % (768 * 192 * 2)); I('s_mov_b32 s27, 0x20000')
    I('s_sub_u32 s40, s2, %d' % NMAIN)
    I('v_lshlrev_b32 v%d, 4, v%d' % (V_L16, L))
    if cfg.prefetch_code:
        I('s_getpc_b64 s[46:47]')
        a.label('L_pc')
        I('s_sub_u32 s46, s46, L_pc-%s_kernel' % NAME)
        I('s_subb_u32 s47, s47, 0')
        I('s_lshl_b32 s48, s%d, 10' % S_W)
        I('v_add_u32 v2, s48, v%d' % V_L16)
        I('s_mov_b32 s48, (L_code_end-%s_kernel)/4096' % NAME)
        a.label('L_pf')
        I('global_load_dwordx4 v[252:255], v2, s[46:47]')
        a.vmq = []
        I('v_add_u32 v2, 4096, v2')
        I('s_sub_u32 s48, s48, 1')
        I('s_cmp_lg_u32 s48, 0')
        I('s_cbranch_scc1 L_pf')
    I('s_waitcnt lgkmcnt(0)'); a.forget()
    I('s_cmp_ge_u32 s40, 24')
    I('s_cbranch_scc1 L_hb')
    I('s_mul_i32 s41, s40, 43'); I('s_lshr_b32 s41, s41, 8')
    I('s_mul_i32 s42, s41, 6'); I('s_sub_u32 s42, s40, s42')
    I('s_mul_i32 s43, s41, 192')
    I('s_lshr_b32 s46, s42, 1'); I('s_lshl_b32 s46, s46, 6'); I('s_add_u32 s43, s43, s46')
    I('s_and_b32 s46, s42, 1'); I('s_add_u32 s43, s43, s46')
    I('v_lshrrev_b32 v10, 5, v%d' % L)
    I('v_and_b32 v11, 31, v%d' % L)
    I('s_movk_i32 s46, 3072')
    I('v_lshlrev_b32 v12, 1, v11')
    I('v_mad_u32_u24 v12, v10, s46, v12')
    I('s_lshl_b32 s46, s%d, 4' % S_W)
    I('s_add_u32 s46, s46, s43')
    I('s_mul_i32 s46, s46, 384')
    for cb in range(6):
        for i4 in range(4):
            I('buffer_load_ushort v%d, v12, %s, s46 offen offset:%d' % (16 + cb * 4 + i4, srd(24), i4 * 768 + cb * 64))
    I('s_movk_i32 s47, %d' % (8 * 1536))
    I('v_lshlrev_b32 v13, 2, v11')
    I('v_mad_u32_u24 v13, v10, s47, v13')
    I('s_mul_i32 s47, s%d, %d' % (S_W, 48 * 1536))
    I('s_lshl_b32 s48, s43, 1')
    I('s_add_u32 s47, s47, s48')
    for k in range(3):
        for i in range(8):
            I('buffer_load_ushort v%d, v13, %s, s47 offen' % (40 + k * 8 + i, srd(SRD_W1)))
            I('s_add_u32 s47, s47, %d' % (1536 if i < 7 else 9 * 1536))
    I('s_mul_i32 s46, s41, 147456')
    I('s_lshl_b32 s48, s42, 12'); I('s_add_u32 s46, s46, s48')
    I('s_lshl_b32 s48, s%d, 10' % S_W); I('s_add_u32 s46, s46, s48')
    I('s_add_u32 s46, s46, %d' % WS_W2)
    for cb in range(6):
        for i4 in range(4): I('v_lshlrev_b32 v%d, 16, v%d' % (16 + cb * 4 + i4, 16 + cb * 4 + i4))
        I('buffer_store_dwordx4 v[%d:%d], v%d, %s, s46 offen sc1' % (16 + cb * 4, 19 + cb * 4, V_L16, srd(SRD_WS)))
        I('s_add_u32 s46, s46, 24576')
    I('s_mul_i32 s46, s40, 12288')
    I('s_mul_i32 s48, s%d, 3072' % S_W); I('s_add_u32 s46, s46, s48')
    for k in range(3):
        for r in range(4):
            I('v_lshl_or_b32 v%d, v%d, 16, v%d' % (64 + k * 4 + r, 40 + k * 8 + 2 * r + 1, 40 + k * 8 + 2 * r))
        I('buffer_store_dwordx4 v[%d:%d], v%d, %s, s46 offen offset:%d sc1' % (64 + k * 4, 67 + k * 4, V_L16, srd(SRD_WS), WS_W1 + k * 1024))
    I('s_branch L_hdone')
    a.forget()
    a.label('L_hb')
    I('s_cmp_ge_u32 s40, 28')
    I('s_cbranch_scc1 L_hz')
    I('s_sub_u32 s41, s40, 24')
    I('s_mul_i32 s42, s41, 192'); I('s_mul_i32 s43, s%d, 48' % S_W); I('s_add_u32 s42, s42, s43')
    I('s_lshl_b32 s43, s42, 1')
    I('s_add_u32 s44, s44, s43'); I('s_addc_u32 s45, s45, 0')
    I('s_load_dwordx8 s[72:79], s[44:45], 0')
    I('s_load_dwordx8 s[80:87], s[44:45], 32')
    I('s_load_dwordx8 s[88:95], s[44:45], 64')
    I('s_mul_i32 s42, s42, 384')
    I('v_lshlrev_b32 v12, 3, v%d' % L)
    I('v_cmp_gt_u32 vcc, 48, v%d' % L)
    I('v_mov_b32 v13, 0x%x' % BIG)
    I('v_cndmask_b32 v12, v13, v12, vcc')
    for r in range(48):
        I('buffer_load_dwordx2 v[%d:%d], v12, %s, s42 offen offset:%d' % (104 + 2 * r, 105 + 2 * r, srd(24), (r % 8) * 384))
        if r % 8 == 7: I('s_add_u32 s42, s42, 3072')
    for i in range(4): I('v_mov_b32 v%d, 0' % (4 + i))
    for r in range(48):
        sreg = 72 + r // 2
        if r % 2 == 0: I('s_lshl_b32 s46, s%d, 16' % sreg)
        else: I('s_and_b32 s46, s%d, 0xffff0000' % sreg)
        for d in range(2):
            I('v_lshlrev_b32 v8, 16, v%d' % (104 + 2 * r + d))
            I('v_and_b32 v9, 0xffff0000, v%d' % (104 + 2 * r + d))
            I('v_fmac_f32 v%d, s46, v8' % (4 + 2 * d))
            I('v_fmac_f32 v%d, s46, v9' % (5 + 2 * d))
    I('s_lshl_b32 s46, s%d, 10' % S_W)
    I('v_add_u32 v10, s46, v%d' % V_L16)
    I('ds_write_b128 v10, v[4:7]')
    a.wait_lg(n=0)
    I('s_barrier')
    for k in range(4): I('ds_read_b128 v[%d:%d], v%d offset:%d' % (16 + 4 * k, 19 + 4 * k, V_L16, k * 1024))
    for k in range(1, 4):
        for i in range(4): I('v_add_f32 v%d, v%d, v%d' % (16 + i, 16 + i, 16 + 4 * k + i))
    I('v_cndmask_b32 v12, v13, v%d, vcc' % V_L16)
    I('s_mul_i32 s46, s41, 768')
    I('s_add_u32 s46, s46, %d' % WS_BIAS)
    I('s_cmp_lg_u32 s%d, 0' % S_W)
    I('s_cbranch_scc1 L_hdone')
    I('buffer_store_dwordx4 v[16:19], v12, %s, s46 offen sc1' % srd(SRD_WS))
    I('s_branch L_hdone')
    a.forget()
    a.label('L_hz')
    nz = cfg.R * 3072 + 4096
    assert nz % 4096 == 0
    for i in range(4): I('v_mov_b32 v%d, 0' % (4 + i))
    I('s_lshl_b32 s46, s%d, 10' % S_W)
    I('s_add_u32 s46, s46, %d' % WS_SUM)
    for k in range(nz // 4096):
        I('buffer_store_dwordx4 v[4:7], v%d, %s, s46 offen sc1' % (V_L16, srd(SRD_WS)))
        I('s_add_u32 s46, s46, 4096')
    a.label('L_hdone')
    I('s_waitcnt vmcnt(0) lgkmcnt(0)'); a.forget()
    I('s_barrier')
    I('s_cmp_lg_u32 s%d, 0' % S_W)
    I('s_cbranch_scc1 L_end')
    I('v_mov_b32 v4, 1')
    I('v_mov_b32 v5, 0')
    I('s_mov_b64 exec, 1')
    I('buffer_atomic_add v4, v5, %s, 0 offen sc1' % srd(SRD_DBG))
    a.label('L_end')
    I('s_endpgm')

def gen_stamps_out(a, cfg, n):
    I = a.I
    I('s_waitcnt lgkmcnt(0)'); a.smem_pending = set()
    I('s_lshl_b32 s40, s2, 2'); I('s_add_u32 s40, s40, s%d' % S_W); I('s_lshl_b32 s40, s40, 6')
    I('s_add_u32 s40, s40, %d' % WS_STAMP)
    I('v_mov_b32 v1, 0')
    I('s_mov_b64 exec, 1')
    for k in range(n):
        I('v_mov_b32 v2, s%d' % (S_STAMP + 2 * k))
        I('buffer_store_dword v2, v1, %s, s40 offen offset:%d' % (srd(SRD_WS), 4 * k))
    I('s_mov_b64 exec, -1')

def build(cfg):
    a = Asm()
    gen_entry(a, cfg)
    gen_prologue(a, cfg)
    if cfg.stop == 'pro':
        if cfg.stamps: gen_stamps_out(a, cfg, 3)
        gen_dump_y(a)
        a.I('s_branch L_end')
    else:
        import gen2
        gen2.gen_main(a, cfg)
    gen_helper(a, cfg)
    head = open('cdna_kernels/%s.s.ref' % NAME).read().split('; Override')[0] if False else ''
    src = '; generated by gen/gen.py\n'
    src += '; @launch grid=(%d,1,1) block=(256,1,1) lds=%d\n' % (NMAIN + NH, LDS_BYTES)
    src += '.amdgcn_target "amdgcn-amd-amdhsa--gfx950"\n.text\n.globl %s_kernel\n.p2align 8\n.type %s_kernel,@function\n%s_kernel:\n' % (NAME, NAME, NAME)
    src += a.text()
    src += 'L_code_end:\n'
    src += '''.section .rodata,"a"
.p2align 6
.amdhsa_kernel %s_kernel
  .amdhsa_next_free_vgpr 512
  .amdhsa_next_free_sgpr 102
  .amdhsa_accum_offset 256
  .amdhsa_group_segment_fixed_size 0
  .amdhsa_kernarg_size 72
  .amdhsa_user_sgpr_count 2
  .amdhsa_user_sgpr_kernarg_segment_ptr 1
  .amdhsa_system_sgpr_workgroup_id_x 1
.end_amdhsa_kernel
''' % NAME
    return src, a

if __name__ == '__main__':
    sys.modules['gen'] = sys.modules['__main__']
    cfg = Cfg()
    out = sys.argv[1] if len(sys.argv) > 1 else 'cdna_kernels/%s.s' % NAME
    for kv in sys.argv[2:]:
        k, v = kv.split('=')
        setattr(cfg, k, eval(v))
    src, a = build(cfg)
    open(out, 'w').write(src)
    print('instrs', a.count(), 'bytes', len(src), 'nops', dict(a.nops), 'waits', dict(a.nwaits))
```

```python
from asmlib import *
import gen as G
from gen import *

def gdest(eb, t):
    if eb == 0: return ('l', t)
    if eb == 1 and t == 0: return ('l', 7)
    if eb == 1: return ('v', 104 + 8 * (t - 1))
    if eb == 2: return ('v', 152 + 8 * t)
    if eb == 3: return ('a', 128 + 8 * t)
    if eb == 4: return ('a', 184 + 8 * t)
    return ('a', 240 + 8 * t) if t < 2 else ('a', 32 + 8 * (t - 2))
def w1reg(eb, ks):
    if eb == 0: return vr(V_W10 + 4 * ks, 4)
    if eb == 1: return vr(V_W11 + 4 * ks, 4)
    return ar((A_W1A if eb % 2 == 0 else A_W1B) + 4 * ks, 4)

STB2 = 40960
CNT_OFF = None
V_FLAG, V_SA = 102, 103
FA, FB = 0, 48
V_EW, V_ER, V_OUT, V_XL = 97, 98, 99, 102
V_S, V_RAW, V_TMP = 208, 216, 240
A_ACC = [0, 16]
A_BIAS = [72, 112]
A_X, A_ID, A_GL = 88, 100, 104
KORD = [11, 6, 7, 8, 9, 10, 4, 5, 2, 3, 0, 1]
SPIN_MAX = 1 << 18

def raw0_reg(ks, hr):
    if ks in (6, 7, 8): return V_RAW + (ks - 6) * 8 + 4 * hr
    if ks in (9, 10): return V_TMP + (ks - 9) * 8 + 4 * hr
    if ks == 11: return FA + 40 + 4 * hr
    return FB + ks * 8 + 4 * hr

def gen_main(a, cfg):
    I = a.I
    L = V_LANE
    ws = srd(SRD_WS)
    cnt_off = WS_SUM + cfg.R * 3072
    a.sect = 'p1'
    I('s_mul_i32 s40, s%d, 224' % S_R0)
    I('s_add_u32 s40, s40, s%d' % S_C0)
    I('s_mul_i32 s%d, s40, 384' % S_ROW)
    for t in range(1, 7): I('s_add_u32 s%d, s%d, %d' % (S_ROW + t, S_ROW + t - 1, 224 * 384))
    I('s_and_b32 s40, s2, %d' % (cfg.R - 1))
    I('s_mul_i32 s40, s40, 3072')
    I('s_mul_i32 s41, s%d, 768' % S_W)
    I('s_add_u32 s40, s40, s41')
    I('s_add_u32 s%d, s40, %d' % (S_AT, WS_SUM))
    I('s_mul_i32 s%d, s%d, 73728' % (S_W1F, S_W))
    I('s_mul_i32 s%d, s%d, 147456' % (S_W2, S_W))
    I('s_add_u32 s%d, s%d, %d' % (S_W2, S_W2, WS_W2))
    I('s_mov_b32 s6, 0xaaaaaaaa'); I('s_mov_b32 s7, 0xaaaaaaaa')
    I('v_and_b32 v%d, 0x19, v%d' % (V_AT, L))
    I('v_lshrrev_b32 v102, 5, v%d' % L)
    I('v_lshl_or_b32 v%d, v102, 2, v%d' % (V_AT, V_AT))
    I('v_lshrrev_b32 v102, 1, v%d' % L)
    I('v_and_b32 v102, 2, v102')
    I('v_or_b32 v%d, v%d, v102' % (V_AT, V_AT))
    I('v_lshlrev_b32 v%d, 2, v%d' % (V_AT, V_AT))
    I('v_and_b32 v102, 2, v%d' % L)
    I('v_lshlrev_b32 v102, 30, v102')
    I('v_or_b32 v%d, v%d, v102' % (V_AT, V_AT))
    I('buffer_load_dword v%d, off, %s, 0 sc1' % (V_FLAG, srd(SRD_DBG)), tag='flag')

    X = lambda n: V_X + 16 * (n % 3)
    Z = lambda n: V_Z + 16 * (n % 2)
    NS = 42
    def yread(q):
        n, ks = divmod(q, 12)
        if n >= NS: return
        t = n % 7
        base, off = (V_YA, t * ROWP) if t < 4 else (V_YB, (t - 4) * ROWP)
        I('ds_read_b128 %s, v%d offset:%d' % (ar(A_RING + 4 * (q % 8), 4), base, off + ks * 1024), tag='y%d' % q)
    def Treg(n): return 152 if n <= 7 else 208
    for q in range(7): yread(q)
    vm = {}
    def w1f_load(eb, ks):
        def f():
            if ks % 4 == 0: I('s_add_u32 s40, s%d, %d' % (S_W1F, WS_W1 + eb * 12288 + ks * 1024))
            I('buffer_load_dwordx4 %s, v%d, %s, s40 offen offset:%d sc1' % (w1reg(eb, ks), V_L16, ws, (ks % 4) * 1024), tag='w1f%d' % eb)
        return f
    for eb, st in ((2, 4), (3, 10), (4, 21), (5, 28)):
        for ks in range(12): vm.setdefault(st + ks // 2, []).append(w1f_load(eb, ks))
    def raw_load(cb, ks, hr, dst, sreg=41):
        def f():
            if hr == 0 or True:
                I('s_add_u32 s%d, s%d, %d' % (sreg, S_W2, cb * 24576 + ks * 2048))
            I('buffer_load_dwordx4 %s, v%d, %s, s%d offen offset:%d sc1' % (vr(dst, 4), V_L16, ws, sreg, hr * 1024), tag='raw%d_%d_%d' % (cb, ks, hr))
        return f
    def raw_pair(cb, ks, d0, d1, sreg=41):
        def f():
            I('s_add_u32 s%d, s%d, %d' % (sreg, S_W2, cb * 24576 + ks * 2048))
            I('buffer_load_dwordx4 %s, v%d, %s, s%d offen sc1' % (vr(d0, 4), V_L16, ws, sreg), tag='raw%d_%d_0' % (cb, ks))
            I('buffer_load_dwordx4 %s, v%d, %s, s%d offen offset:1024 sc1' % (vr(d1, 4), V_L16, ws, sreg), tag='raw%d_%d_1' % (cb, ks))
        return f
    if cfg.w2warm:
        def warm(k):
            def f():
                if k == 0:
                    I('s_lshr_b32 s42, s2, 3'); I('s_lshl_b32 s42, s42, 2'); I('s_add_u32 s42, s42, s%d' % S_W)
                    I('s_mul_i32 s42, s42, 6144'); I('s_add_u32 s42, s42, %d' % WS_W2)
                    I('s_min_u32 s42, s42, %d' % (WS_W2 + 4 * 147456 - 6144))
                if k == 4: I('s_add_u32 s42, s42, 4096')
                I('buffer_load_dwordx4 %s, v%d, %s, s42 offen offset:%d sc1' % (vr(V_RAW, 4), V_L16, ws, (k % 4) * 1024), tag='warm')
            return f
        for k in range(6): vm.setdefault(16 + k // 2, []).append(warm(k))
    for i, ks in enumerate((6, 7, 8, 9, 10)):
        vm.setdefault(35 + i, []).append(raw_pair(0, ks, raw0_reg(ks, 0), raw0_reg(ks, 1)))

    def sq_reduce(eb):
        S = V_SQ
        for k in range(8): I('v_permlane16_swap_b32 v%d, v%d' % (S + k, S + k + 8))
        for k in range(0, 8, 2): I('v_pk_add_f32 %s, %s, %s' % (vr(S + k, 2), vr(S + k, 2), vr(S + k + 8, 2)))
        for k in range(4): I('v_add_f32_dpp v%d, v%d, v%d row_ror:8 row_mask:0xf bank_mask:0x3' % (S + k, S + k, S + k))
        for k in range(4): I('v_add_f32_dpp v%d, v%d, v%d row_ror:8 row_mask:0xf bank_mask:0xc' % (S + k, S + k + 4, S + k + 4))
        for k in range(2): I('v_add_f32_dpp v%d, v%d, v%d row_half_mirror row_mask:0xf bank_mask:0x5' % (S + k, S + k, S + k))
        for k in range(2): I('v_add_f32_dpp v%d, v%d, v%d row_half_mirror row_mask:0xf bank_mask:0xa' % (S + k, S + k + 2, S + k + 2))
        I('v_cndmask_b32 v%d, v%d, v%d, s[6:7]' % (S + 2, S, S + 1))
        I('v_cndmask_b32 v%d, v%d, v%d, s[6:7]' % (S + 3, S + 1, S))
        I('v_add_f32_dpp v%d, v%d, v%d quad_perm:[1,0,3,2] row_mask:0xf bank_mask:0xf' % (S + 2, S + 3, S + 2))
        I('v_add_f32_dpp v%d, v%d, v%d quad_perm:[2,3,0,1] row_mask:0xf bank_mask:0xf' % (S + 4, S + 2, S + 2))
        I('buffer_atomic_add_f32 v%d, v%d, %s, s%d offen offset:%d' % (S + 4, V_AT, ws, S_AT, eb * 128), tag='atom')

    def cvt(n):
        eb, t = divmod(n, 7); k, r = gdest(eb, t)
        d = r if k == 'v' else Treg(n)
        for j in range(8): I('v_cvt_pk_bf16_f32 v%d, v%d, v%d' % (d + j, X(n) + 2 * j, X(n) + 2 * j + 1))
    def moves(n):
        if n < 0 or n >= NS: return [], []
        eb, t = divmod(n, 7); k, r = gdest(eb, t); T = Treg(n)
        if k == 'a': return [(lambda j=j: I('v_accvgpr_write_b32 a%d, v%d' % (r + j, T + j))) for j in range(8)], []
        if k == 'l': return [], [(lambda f=f: I('ds_write_b128 v%d, %s offset:%d' % (V_GL, vr(T + 4 * f, 4), r * 2048 + f * 1024), tag='gw')) for f in range(2)]
        return [], []

    for n in range(NS + 2):
        eb, t = divmod(n, 7)
        a.comment('W %d' % n); stamp(a, cfg, 'W%d' % n)
        TR = []
        if 0 <= n - 1 < NS: TR += [(lambda i=i: I('v_exp_f32 v%d, v%d' % (Z(n - 1) + i, Z(n - 1) + i))) for i in range(16)]
        if 0 <= n - 2 < NS: TR += [(lambda i=i: I('v_rcp_f32 v%d, v%d' % (Z(n - 2) + i, Z(n - 2) + i))) for i in range(16)]
        acw, dsw = moves(n - 3)
        vl = vm.get(n, [])
        if n < NS:
            if t == 0 and eb >= 2: a.wait_vm('w1f%d' % eb)
            for ks in range(12):
                q = 12 * n + ks
                if ks in cfg.ywaits: a.wait_lg('y%d' % (12 * n + cfg.ywaits[ks]))
                I('v_mfma_f32_32x32x16_bf16 %s, %s, %s, %s' % (vr(X(n), 16), w1reg(eb, ks), ar(A_RING + 4 * (q % 8), 4), '0' if ks == 0 else vr(X(n), 16)))
                yread(q + 7)
                if ks in (2, 5) and dsw: dsw.pop(0)()
                if ks in (8, 11) and vl: vl.pop(0)()
                for _ in range(2 if ks % 3 == 2 else 3):
                    if TR: TR.pop(0)()
                if ks % 3 == 2:
                    for _ in range(2):
                        if acw: acw.pop(0)()
            assert not vl
        for f in TR + acw + dsw: f()
        a.comment('P %d' % n); stamp(a, cfg, 'P%d' % n)
        if n == 3:
            a.wait_vm('flag')
            I('v_readfirstlane_b32 s4, v%d' % V_FLAG)
            I('s_cmp_lg_u32 s4, %d' % NH)
            I('s_cbranch_scc1 L_slow1')
            a.label('L_back1')
        if 0 <= n - 1 < NS:
            for j in range(0, 16, 2): I('v_pk_add_f32 %s, %s, s[%d:%d]' % (vr(Z(n - 1) + j, 2), vr(Z(n - 1) + j, 2), S_ONE, S_ONE + 1))
        m = n - 2
        if 0 <= m < NS:
            for j in range(0, 16, 2): I('v_pk_mul_f32 %s, %s, %s' % (vr(X(m) + j, 2), vr(X(m) + j, 2), vr(Z(m) + j, 2)))
            for j in range(0, 16, 2):
                if m % 7 == 0: I('v_pk_mul_f32 %s, %s, %s' % (vr(V_SQ + j, 2), vr(X(m) + j, 2), vr(X(m) + j, 2)))
                else: I('v_pk_fma_f32 %s, %s, %s, %s' % (vr(V_SQ + j, 2), vr(X(m) + j, 2), vr(X(m) + j, 2), vr(V_SQ + j, 2)))
            if m == NS - 1: sq_reduce(5)
            cvt(m)
        if n < NS:
            for j in range(0, 16, 2): I('v_pk_fma_f32 %s, %s, %s, s[%d:%d]' % (vr(Z(n) + j, 2), vr(X(n) + j, 2), vr(X(n) + j, 2), S_AP, S_AP + 1))
            for j in range(0, 16, 2): I('v_pk_mul_f32 %s, %s, %s neg_lo:[1,0] neg_hi:[1,0]' % (vr(Z(n) + j, 2), vr(X(n) + j, 2), vr(Z(n) + j, 2)))
        if 0 <= m < NS - 1 and m % 7 == 6: sq_reduce(m // 7)
    for f in moves(NS - 1)[0]: f()
    stamp(a, cfg, 'p1')

    a.sect = 'sync'
    for ks in (11, 4, 5, 2, 3, 0, 1): raw_pair(0, ks, raw0_reg(ks, 0), raw0_reg(ks, 1))()
    I('v_lshrrev_b32 v4, 5, v%d' % L)
    I('v_and_b32 v5, 31, v%d' % L)
    I('s_movk_i32 s42, 384')
    I('s_lshl_b32 s43, s%d, 4' % S_W)
    I('v_mul_u32_u24 v%d, s42, v5' % V_XL)
    I('v_lshlrev_b32 v6, 31, v4')
    I('v_add3_u32 v%d, v%d, s43, v6' % (V_XL, V_XL))
    def xload(j):
        if j >= 42: return
        cb, t = divmod(j, 7)
        I('buffer_load_dwordx4 %s, v%d, %s, s%d offen offset:%d' % (ar(A_X + 4 * (j % 3), 4), V_XL, srd(SRD_X), S_ROW + t, cb * 64), tag='x%d' % j)
    xload(0); xload(1)
    I('v_lshlrev_b32 v7, 4, v4')
    I('s_mul_i32 s44, s%d, 768' % S_W)
    I('s_add_u32 s44, s44, %d' % WS_BIAS)
    I('v_mov_b32 v%d, v7' % L)
    V_BO = L
    def bias_load(cb, g):
        I('buffer_load_dwordx4 %s, v%d, %s, s44 offen offset:%d sc1' % (ar(A_BIAS[cb % 2] + 4 * g, 4), V_BO, ws, cb * 128 + g * 32), tag='bias%d' % cb)
    for g in range(4): bias_load(0, g)
    I('v_lshrrev_b32 v8, 4, v%d' % V_L16)
    I('v_lshrrev_b32 v9, 4, v8')
    I('v_lshlrev_b32 v9, 7, v9')
    I('v_and_b32 v10, 7, v8')
    I('v_lshl_add_u32 v9, v10, 4, v9')
    I('s_mul_i32 s45, s%d, 384' % S_W)
    I('buffer_load_dwordx4 v[0:3], v9, %s, s45 offen' % srd(SRD_GAM), tag='gam')
    stamp(a, cfg, 'sy0')
    a.wait_vm('atom')
    stamp(a, cfg, 'sy1')
    I('s_barrier')
    stamp(a, cfg, 'sy2')
    I('s_cmp_lg_u32 s%d, 0' % S_W)
    I('s_cbranch_scc1 L_nopoll')
    save = (list(a.vmq), list(a.lgq))
    I('s_and_b32 s46, s2, 7')
    I('s_lshl_b32 s46, s46, 8')
    I('s_add_u32 s46, s46, %d' % cnt_off)
    I('v_mov_b32 v11, 1')
    I('v_lshlrev_b32 v12, 8, v8')
    I('s_mov_b64 exec, 1')
    I('buffer_atomic_add v11, off, %s, s46 sc1' % ws)
    I('s_mov_b64 exec, 0xff')
    I('s_mov_b32 s46, %d' % cnt_off)
    I('s_mov_b32 s4, %d' % SPIN_MAX)
    a.label('L_poll')
    I('buffer_load_dword v11, v12, %s, s46 offen sc1' % ws)
    I('s_waitcnt vmcnt(0)'); a.vmq = []
    I('v_cmp_ne_u32 vcc, 28, v11')
    I('s_sub_u32 s4, s4, 1')
    I('s_cbranch_scc1 L_polled')
    I('s_cbranch_vccnz L_poll')
    a.label('L_polled')
    if cfg.marks:
        I('s_mov_b64 exec, 1')
        I('v_mov_b32 v11, s4')
        I('v_mov_b32 v12, 1')
        I('v_cmp_eq_u32 vcc, -1, v11')
        I('s_and_b64 exec, vcc, exec')
        I('buffer_atomic_add v12, off, %s, 0 offset:12 sc1' % srd(SRD_DBG))
        a.vmq = []
    I('s_mov_b64 exec, -1')
    a.label('L_nopoll')
    stamp(a, cfg, 'sy3')
    a.vmq, a.lgq = save
    I('s_mul_i32 s46, s%d, 4608' % S_W)
    I('s_add_u32 s46, s46, %d' % EXB)
    I('s_movk_i32 s47, 576')
    I('v_mul_u32_u24 v%d, s47, v4' % V_EW)
    I('v_lshl_add_u32 v%d, v5, 4, v%d' % (V_EW, V_EW))
    I('v_add_u32 v%d, s46, v%d' % (V_EW, V_EW))
    I('v_lshrrev_b32 v11, 3, v8')
    I('s_lshl_b32 s46, s%d, 3' % S_W)
    I('v_add_u32 v11, s46, v11')
    I('v_mul_u32_u24 v%d, s47, v10' % V_ER)
    I('v_lshl_add_u32 v%d, v11, 4, v%d' % (V_ER, V_ER))
    I('v_add_u32 v%d, %d, v%d' % (V_ER, EXB, V_ER))
    I('v_mul_u32_u24 v%d, s42, v11' % V_OUT)
    I('v_lshl_add_u32 v%d, v10, 3, v%d' % (V_OUT, V_OUT))
    I('s_lshl_b32 s46, s%d, 10' % S_W)
    I('s_add_u32 s46, s46, %d' % STB2)
    I('v_add_u32 v%d, s46, v7' % V_SA)
    I('v_add_u32 v13, s46, v%d' % V_L16)
    I('s_lshl_b32 s46, s%d, 3' % S_W)
    I('v_subrev_u32 v14, s46, v8')
    I('v_and_b32 v15, 1, v8')
    I('v_lshlrev_b32 v15, 4, v15')
    I('v_mov_b32 v16, 0x3f80')
    I('v_lshlrev_b32 v15, v15, v16')
    I('v_lshrrev_b32 v14, 1, v14')
    for d in range(4):
        I('v_cmp_eq_u32 vcc, %d, v14' % d)
        I('v_cndmask_b32 v16, 0, v15, vcc')
        I('v_accvgpr_write_b32 a%d, v16' % (A_ID + d))
    I('v_and_b32 v14, 8, v8')
    I('v_lshlrev_b32 v14, 1, v14')
    I('v_xor_b32 v14, 16, v14')
    I('v_cmp_gt_u32 s[66:67], 48, v8')
    I('v_mov_b32 v15, 0x%x' % BIG)
    I('v_cndmask_b32 v15, v15, v%d, s[66:67]' % V_L16)
    for i in range(4):
        I('v_lshlrev_b32 v%d, v14, v%d' % (i, i))
        I('v_and_b32 v%d, 0xffff0000, v%d' % (i, i))
    I('s_mul_i32 s46, s%d, 768' % S_W)
    I('s_add_u32 s46, s46, %d' % WS_SUM)
    I('s_mov_b32 s48, 0x%x' % f2u(1.0 / (ALPHA * ALPHA)))
    I('s_lshl_b32 s49, s%d, 2' % S_W)
    I('v_mov_b32 v14, s49')
    I('v_mov_b32 v12, 0x%x' % f2u(1e-6))
    I('s_barrier')
    stamp(a, cfg, 'sync')
    SB = 4
    regs = [16, 20, 24, 28, 32, 36, 4, 8]
    for r in range(cfg.R):
        if r and r % 2 == 0: I('s_add_u32 s46, s46, 6144')
        I('buffer_load_dwordx4 %s, v15, %s, s46 offen offset:%d sc1' % (vr(regs[r], 4), ws, (r % 2) * 3072), tag='sum')
    def padd(d, s_):
        for k in (0, 2): I('v_pk_add_f32 %s, %s, %s' % (vr(d + k, 2), vr(d + k, 2), vr(s_ + k, 2)))
    a.wait_vm('sum')
    padd(16, 20); padd(24, 28); padd(32, 36); padd(4, 8); padd(16, 24); padd(32, 4); padd(16, 32)
    for i in range(4): I('v_fma_f32 v%d, v%d, s48, v12' % (16 + i, 16 + i))
    for i in range(4): I('v_sqrt_f32 v%d, v%d' % (16 + i, 16 + i))
    I('v_add_f32 v20, v16, v17')
    I('v_add_f32 v21, v18, v19')
    I('v_add_f32 v20, v20, v21')
    I('v_cndmask_b32 v20, 0, v20, s[66:67]')
    for i in range(4): I('v_mul_f32 v%d, v%d, v%d' % (i, i, 16 + i)) if i < 2 else None
    I('v_add_f32_dpp v20, v20, v20 quad_perm:[1,0,3,2] row_mask:0xf bank_mask:0xf')
    for i in range(2, 4): I('v_mul_f32 v%d, v%d, v%d' % (i, i, 16 + i))
    I('v_add_f32_dpp v20, v20, v20 quad_perm:[2,3,0,1] row_mask:0xf bank_mask:0xf')
    I('v_add_f32_dpp v20, v20, v20 row_half_mirror row_mask:0xf bank_mask:0xf')
    I('v_add_f32_dpp v20, v20, v20 row_ror:8 row_mask:0xf bank_mask:0xf')
    I('v_mov_b32 v21, v20')
    I('v_permlane16_swap_b32 v20, v21')
    I('v_add_f32 v20, v20, v21')
    I('v_mov_b32 v21, v20')
    I('v_permlane32_swap_b32 v20, v21')
    I('v_add_f32 v20, v20, v21')
    I('ds_write_b32 v14, v20')
    a.wait_lg(n=0)
    I('s_barrier')
    I('v_mov_b32 v14, 0')
    I('ds_read_b128 v[20:23], v14')
    I('v_add_f32 v20, v20, v21')
    I('v_add_f32 v22, v22, v23')
    I('v_add_f32 v20, v20, v22')
    I('v_fma_f32 v20, v20, 0x%x, v12' % f2u(1.0 / 768)) if False else None
    I('v_mov_b32 v21, 0x%x' % f2u(1.0 / 768))
    I('v_fma_f32 v20, v20, v21, v12')
    I('v_rcp_f32 v20, v20')
    I('v_mov_b32 v21, 0x%x' % f2u(1.0 / ALPHA))
    I('v_mul_f32 v20, v20, v21')
    for i in range(4): I('v_fma_f32 v%d, v%d, v20, v21' % (i, i))
    I('ds_write_b128 v13, v[0:3]', tag='sw')
    a.wait_lg(n=0)
    stamp(a, cfg, 's')

    a.sect = 'p2'
    F = lambda cb: FA if cb % 2 == 0 else FB
    scnt = [0]
    def sread(ks, hr):
        slot = scnt[0] % 2; scnt[0] += 1
        I('ds_read_b128 %s, v%d offset:%d' % (vr(V_S + 4 * slot, 4), V_SA, ks * 64 + hr * 32), tag='s')
        return V_S + 4 * slot
    def prep(raw, sreg, dst, rev=False):
        for i in range(4): I('v_mul_f32 v%d, v%d, v%d' % (raw + i, raw + i, sreg + i))
        for d in range(2): I('v_cvt_pk_bf16_f32 v%d, v%d, v%d' % (dst + d, raw + 2 * d, raw + 2 * d + 1))
    def greg(ks, t):
        eb, half = divmod(ks, 2); k, r = gdest(eb, t)
        if k == 'l': return ar(A_GL + 4 * half, 4)
        return (vr if k == 'v' else ar)(r + 4 * half, 4)
    def gread(idx, f):
        I('ds_read_b128 %s, v%d offset:%d' % (ar(A_GL + 4 * f, 4), V_GL, idx * 2048 + f * 1024), tag='gl')
    def exw(j, g):
        I('ds_write_b128 v%d, %s offset:%d' % (V_EW, ar(A_ACC[j % 2] + 4 * g, 4), (j % 2) * 18432 + g * 1152), tag='exw')
    def exr(j, sw):
        I('ds_read_b128 %s, v%d offset:%d' % (vr(V_TMP + 4 * sw, 4), V_ER, (j % 2) * 18432 + sw * 4608), tag='exr')
    def fin(j):
        cb, t = divmod(j, 7); T = V_TMP
        Fs = []
        for (d, s_) in ((0, 4), (8, 12), (0, 8)):
            for i in range(4): Fs.append(lambda d=d, s_=s_, i=i: I('v_add_f32 v%d, v%d, v%d' % (T + d + i, T + d + i, T + s_ + i)))
        Fs.append(lambda: I('v_cvt_pk_bf16_f32 v%d, v%d, v%d' % (T, T, T + 1)))
        Fs.append(lambda: I('v_cvt_pk_bf16_f32 v%d, v%d, v%d' % (T + 1, T + 2, T + 3)))
        Fs.append(lambda: I('buffer_store_dwordx2 %s, v%d, %s, s%d offen offset:%d%s' % (vr(T, 2), V_OUT, srd(SRD_OUT), S_ROW + t, cb * 64, cfg.out_flags), tag='st'))
        return Fs
    units = {}
    for cb in range(1, 6): units[cb] = [(ks, hr) for ks in KORD for hr in range(2)]
    allu = [(cb, ks, hr) for cb in range(1, 6) for (ks, hr) in units[cb]]
    def ublock(i):
        cb, k = divmod(i, 24)
        if cb == 0: return 1 + k // 4
        return cb * 7 + (k * 7) // 24
    sched = {}
    for i in range(len(allu)): sched.setdefault(ublock(i), []).append(i)
    ld_next = [0]
    def rawissue(upto):
        while ld_next[0] < min(upto, len(allu)):
            i = ld_next[0]; cb, ks, hr = allu[i]
            if hr == 0: I('s_add_u32 s41, s%d, %d' % (S_W2, cb * 24576 + ks * 2048))
            I('buffer_load_dwordx4 %s, v%d, %s, s41 offen offset:%d sc1' % (vr(V_RAW + 4 * (i % 6), 4), V_L16, ws, hr * 1024), tag='raw')
            ld_next[0] += 1
    for j in range(42):
        cb, t = divmod(j, 7)
        a.comment('block %d' % j); stamp(a, cfg, 'B%d' % j)
        acc = ar(A_ACC[j % 2], 16)
        order = list(KORD)
        if t == 0: order = [11, 6, 7, 8, 9, 2, 3, 10, 4, 5, 0, 1]
        RES = 6 if t else 8
        mf = [('k', ks) for ks in order]; mf.insert(RES, ('x', 0))
        ds = {k: [] for k in range(13)}; post = {k: [] for k in range(13)}
        if t == 0:
            ds[0].append(lambda: gread(7, 0)); ds[1].append(lambda: gread(7, 1))
            ds[6].append(lambda: gread(0, 0)); ds[7].append(lambda: gread(0, 1))
        else:
            ds[0].append(lambda: gread(t, 0)); ds[1].append(lambda: gread(t, 1))
        if j >= 2:
            fl = fin(j - 2)
            post[0] += fl[0:4]; post[1] += fl[4:8]; post[2] += fl[8:]
        if j >= 1:
            for g in range(4): ds[3 + g].append(lambda g=g: exw(j - 1, g))
            def bar():
                a.wait_lg('exw'); I('s_barrier')
            post[8].append(bar)
            for sw in range(4): ds[9 + sw].append(lambda sw=sw: exr(j - 1, sw))
        post[RES].append(lambda: xload(j + 2))
        if t == 3 and cb < 5:
            for g in range(4): post[3 + g].append(lambda g=g: bias_load(cb + 1, g))
        if j == 0:
            pend = []
            seqk = [ks for (k, ks) in mf if k == 'k']
            sr_ = {}
            def both(ks):
                sr_[(ks, 0)] = sread(ks, 0); sr_[(ks, 1)] = sread(ks, 1)
            both(seqk[0])
            pos = 0
            for (k, ks) in mf:
                if k == 'k':
                    hrs = (1, 0) if ks == 11 else (0, 1)
                    if ks == 11:
                        for hr in (0, 1):
                            for i in range(4): I('v_mul_f32 v%d, v%d, v%d' % (raw0_reg(ks, hr) + i, raw0_reg(ks, hr) + i, sr_[(ks, hr)] + i))
                        nx = seqk[seqk.index(ks) + 1]; both(nx)
                        for d in (3, 2, 1, 0): I('v_cvt_pk_bf16_f32 v%d, v%d, v%d' % (FA + 44 + d, FA + 40 + 2 * d, FA + 41 + 2 * d))
                    else:
                        for hr in (0, 1):
                            for i in range(4): I('v_mul_f32 v%d, v%d, v%d' % (raw0_reg(ks, hr) + i, raw0_reg(ks, hr) + i, sr_[(ks, hr)] + i))
                        if seqk.index(ks) + 1 < 12: both(seqk[seqk.index(ks) + 1])
                        for hr in (0, 1):
                            for d in range(2): I('v_cvt_pk_bf16_f32 v%d, v%d, v%d' % (FA + 4 * ks + 2 * hr + d, raw0_reg(ks, hr) + 2 * d, raw0_reg(ks, hr) + 2 * d + 1))
                    I('v_mfma_f32_32x32x16_bf16 %s, %s, %s, %s' % (acc, vr(FA + 4 * ks, 4), greg(ks, t), ar(A_BIAS[0], 16) if pos == 0 else acc))
                    if ks == 8: pass
                else:
                    I('v_mfma_f32_32x32x16_bf16 %s, %s, %s, %s' % (acc, ar(A_ID, 4), ar(A_X + 4 * (j % 3), 4), acc))
                for f in ds[pos] + post[pos]: f()
                if pos == 4: rawissue(3)
                if pos == 8: rawissue(6)
                pos += 1
            continue
        us = sched.get(j, [])
        if len(us) == 4: uslots, sslots, sregs = [7, 8, 10, 11], [2, 2, 7, 8], [V_S, V_TMP + 12, V_S + 4, V_S]
        else: uslots, sslots, sregs = [7, 10, 11], [2, 7, 8], [V_S, V_S + 4, V_S]
        for i, u in enumerate(us):
            cbn, ks, hr = allu[u]
            ds[sslots[i]].append(lambda ks=ks, hr=hr, r=sregs[i]: I('ds_read_b128 %s, v%d offset:%d' % (vr(r, 4), V_SA, ks * 64 + hr * 32), tag='s'))
            def pr(u=u, cbn=cbn, ks=ks, hr=hr, r=sregs[i]):
                prep(V_RAW + 4 * (u % 6), r, F(cbn) + 4 * ks + 2 * hr)
                rawissue(u + 7)
            post[uslots[i]].insert(0, pr)
        for pos, (k, ks) in enumerate(mf):
            if k == 'k':
                I('v_mfma_f32_32x32x16_bf16 %s, %s, %s, %s' % (acc, vr(F(cb) + 4 * ks, 4), greg(ks, t), ar(A_BIAS[cb % 2], 16) if pos == 0 else acc))
            else:
                I('v_mfma_f32_32x32x16_bf16 %s, %s, %s, %s' % (acc, ar(A_ID, 4), ar(A_X + 4 * (j % 3), 4), acc))
            for f in ds[pos] + post[pos]: f()
    for f in fin(40): f()
    for g in range(4): exw(41, g)
    a.wait_lg('exw'); I('s_barrier')
    for sw in range(4): exr(41, sw)
    for f in fin(41): f()
    stamp(a, cfg, 'end')
    if cfg.stamps: gen_stamps_out(a, cfg, len(cfg.stamps))
    I('s_endpgm')
    a.forget()
    a.label('L_slow1')
    I('s_mov_b32 s5, %d' % SPIN_MAX)
    if cfg.marks:
        I('s_mov_b64 exec, 1')
        I('v_mov_b32 v%d, 1' % V_FLAG)
        I('buffer_atomic_add v%d, off, %s, 0 offset:4 sc1' % (V_FLAG, srd(SRD_DBG)))
        I('s_waitcnt vmcnt(0)'); a.vmq = []
        I('s_mov_b64 exec, -1')
    a.label('L_slow1b')
    I('s_sleep 2')
    I('buffer_load_dword v%d, off, %s, 0 sc1' % (V_FLAG, srd(SRD_DBG)))
    I('s_waitcnt vmcnt(0)'); a.vmq = []
    I('v_readfirstlane_b32 s4, v%d' % V_FLAG)
    I('s_sub_u32 s5, s5, 1')
    I('s_cbranch_scc1 %s' % ('L_slow1c' if cfg.marks else 'L_back1'))
    I('s_cmp_lg_u32 s4, %d' % NH)
    I('s_cbranch_scc1 L_slow1b')
    I('s_branch L_back1')
    if cfg.marks:
        a.label('L_slow1c')
        I('s_mov_b64 exec, 1')
        I('v_mov_b32 v%d, 1' % V_FLAG)
        I('buffer_atomic_add v%d, off, %s, 0 offset:8 sc1' % (V_FLAG, srd(SRD_DBG)))
        I('s_waitcnt vmcnt(0)'); a.vmq = []
        I('s_mov_b64 exec, -1')
        I('s_branch L_back1')
```

```python
import sys, math, struct
from asmlib import *

NAME = 'standalone__modern_conv_block_convnext_v2__vision'
def f2u(x): return struct.unpack('<I', struct.pack('<f', x))[0]

class Cfg:
    stop = None
    stamps = False
    R = 8
    out_flags = ''
    prefetch_code = True
    w2warm = True
    marks = False
    rt = False
    ywaits = {0: 6, 7: 9, 10: 11}

ALPHA = 0.1029432397 ** (1.0 / 3.0)
APRIME = 2.302208198 / ALPHA
NMAIN = 224
NH = 29
XBYTES = 224 * 224 * 384
WS_W1 = 0
WS_W2 = 0x48000
WS_BIAS = 0xD8000
WS_SUM = 0xD9000
WS_DUMP = 0x200000
WS_STAMP = 0x100000
WS_SIZE = 268435456
HB = 2048
ROWP = 13056
GB = HB + 7 * ROWP
EXB = 2048
STB = 40960
BTB = 44032
LDS_BYTES = 163840
BIG = 0x80000000

S_W = 3
SRD_X, SRD_DW, SRD_W1, SRD_WS, SRD_OUT, SRD_GAM, SRD_DBG = 8, 12, 16, 20, 24, 28, 32
S_R0, S_C0, S_XB = 36, 37, 38
S_T0 = 40
S_ONE, S_AP = 60, 62
S_PLO, S_PHI = 64, 65
S_EX = 66
S_ROW, S_AT, S_W1F, S_W2 = 70, 77, 78, 79
S_STAMP = 80

V_X, V_Z, V_SQ = 0, 48, 80
V_LANE, V_YA, V_YB, V_AT, V_L16, V_GL = 96, 97, 98, 99, 100, 101
V_W10, V_W11 = 160, 208
V_SPARE = 159
A_RING = 0
A_W1A, A_W1B = 32, 80
A_G = 128

def srd(b): return 's[%d:%d]' % (b, b + 3)

def stamp(a, cfg, name):
    if cfg.stamps and name in cfg.stamps:
        idx = cfg.stamps.index(name)
        a.I('%s s[%d:%d]' % ('s_memrealtime' if cfg.rt else 's_memtime', S_STAMP + 2 * idx, S_STAMP + 2 * idx + 1))

def gen_entry(a, cfg):
    I = a.I
    a.sect = 'entry'
    I('s_load_dwordx2 s[8:9], s[0:1], 0')
    I('s_load_dwordx2 s[12:13], s[0:1], 8')
    I('s_load_dwordx2 s[16:17], s[0:1], 16')
    I('s_load_dwordx2 s[20:21], s[0:1], 64')
    I('s_load_dwordx2 s[32:33], s[0:1], 56')
    stamp(a, cfg, 'start')
    if cfg.stamps: I('s_memrealtime s[98:99]')
    I('v_lshrrev_b32 v1, 6, v0')
    I('v_and_b32 v%d, 63, v0' % V_LANE)
    I('v_readfirstlane_b32 s%d, v1' % S_W)
    I('s_mov_b32 s18, %d' % (192 * 768 * 2))
    I('s_mov_b32 s19, 0x20000')
    I('s_mov_b32 s22, %d' % WS_SIZE)
    I('s_mov_b32 s23, 0x20000')
    I('s_mov_b32 s34, 256')
    I('s_mov_b32 s35, 0x20000')
    I('s_cmp_ge_u32 s2, %d' % NMAIN)
    I('s_cbranch_scc1 L_helper')

def gen_prologue(a, cfg):
    I = a.I
    a.sect = 'pro'
    L = V_LANE
    I('s_mov_b32 s10, %d' % XBYTES)
    I('s_mov_b32 s11, 0x20000')
    I('s_mov_b32 s14, 3456')
    I('s_mov_b32 s15, 0x20000')
    I('v_and_b32 v20, 15, v%d' % L)
    I('v_bfe_u32 v21, v%d, 4, 1' % L)
    I('v_lshlrev_b32 v22, 1, v20')
    I('v_mad_u32_u24 v23, v21, 384, v22')
    a.ins.pop()
    I('s_movk_i32 s40, 384')
    I('s_movk_i32 s41, 1152')
    I('v_mad_u32_u24 v23, v21, s40, v22')
    I('v_mad_u32_u24 v22, v21, s41, v22')
    I('s_and_b32 s42, s2, 7')
    I('s_lshr_b32 s43, s2, 3')
    I('s_mul_i32 s44, s43, 37')
    I('s_lshr_b32 s44, s44, 8')
    I('s_mul_i32 s45, s44, 7')
    I('s_sub_u32 s45, s43, s45')
    I('s_lshl_b32 s42, s42, 2')
    I('s_add_u32 s42, s42, s44')
    I('s_mul_i32 s%d, s42, 7' % S_R0)
    I('s_lshl_b32 s%d, s45, 5' % S_C0)
    I('s_mul_i32 s46, s%d, 96' % S_W)
    for pi in range(5):
        for cg in range(3):
            if pi < 3: va, off = 22, pi * 384 + cg * 32
            else: va, off = 23, (6 if pi == 3 else 8) * 384 + cg * 32
            I('buffer_load_ushort v%d, v%d, %s, s46 offen offset:%d' % (pi * 3 + cg, va, srd(SRD_DW), off), tag='dw')
    I('s_lshl_b32 s47, s%d, 3' % S_W)
    I('s_add_u32 s48, s47, 1')
    I('s_movk_i32 s49, 171')
    for j in range(3):
        I('v_add_u32 v24, %d, v%d' % (64 * j, L))
        I('v_mul_u32_u24 v25, s49, v24')
        I('v_lshrrev_b32 v25, 12, v25')
        I('v_mul_u32_u24 v26, 24, v25')
        I('v_sub_u32 v26, v24, v26')
        I('v_add_u32 v27, s48, v25')
        I('v_bfe_u32 v27, v27, 1, 3')
        I('v_xor_b32 v26, v26, v27')
        I('v_add_u32 v25, s47, v25')
        I('v_mul_u32_u24 v25, s40, v25')
        I('v_lshl_add_u32 v25, v26, 4, v25')
        I('v_subrev_u32 v%d, %d, v25' % (63 + j, 1024 * j))
    I('s_mul_i32 s50, s%d, 224' % S_R0)
    I('s_add_u32 s50, s50, s%d' % S_C0)
    I('s_sub_u32 s50, s50, 224')
    I('s_mul_i32 s%d, s50, 384' % S_XB)
    I('s_mul_i32 s51, s%d, 3072' % S_W)
    I('s_add_u32 s51, s51, %d' % (HB + 384))
    def row(hr):
        if hr == 0:
            I('s_cmp_eq_u32 s%d, 0' % S_R0)
            I('s_cselect_b32 s52, 0x%x, s%d' % (0x7fff0000, S_XB))
            I('s_mov_b32 m0, s51')
        else:
            I('s_add_u32 s52, s%d, %d' % (S_XB, hr * 224 * 384))
            I('s_add_u32 m0, s51, %d' % (hr * ROWP))
        for j in range(3):
            I('buffer_load_dwordx4 v%d, %s, s52 offen offset:%d lds' % (63 + j, srd(SRD_X), 1024 * j), tag='row%d' % hr)
    stamp(a, cfg, 'i0')
    for hr in range(3): row(hr)
    stamp(a, cfg, 'i1')
    I('v_cmp_le_u32 vcc, 24, v%d' % L)
    I('v_cndmask_b32 v24, 0, 1, vcc')
    I('v_mul_u32_u24 v25, 24, v24')
    I('v_sub_u32 v25, v%d, v25' % L)
    I('v_lshlrev_b32 v25, 4, v25')
    I('s_mov_b32 exec_hi, 0xffff')
    for i in range(3):
        I('s_add_u32 s53, s%d, %d' % (S_W, 4 * i))
        I('s_mul_i32 s54, s53, %d' % (224 * 384))
        I('s_add_u32 s54, s54, s%d' % S_XB)
        I('s_add_u32 s54, s54, %d' % ((-224 + 32) * 384 & 0xffffffff))
        I('s_add_u32 s55, s54, %d' % (191 * 384))
        I('s_add_u32 s56, s%d, s53' % S_R0)
        I('s_sub_u32 s57, s56, 2')
        I('s_cmp_lt_u32 s57, 224'); I('s_cselect_b32 s54, s54, 0x%x' % BIG)
        I('s_sub_u32 s57, s53, 1')
        I('s_cmp_lt_u32 s57, 9'); I('s_cselect_b32 s54, s54, 0x%x' % BIG)
        I('s_cmp_lt_u32 s%d, 192' % S_C0); I('s_cselect_b32 s54, s54, 0x%x' % BIG)
        I('s_sub_u32 s57, s56, 1')
        I('s_cmp_lt_u32 s57, 224'); I('s_cselect_b32 s55, s55, 0x%x' % BIG)
        I('s_cmp_lt_u32 s53, 9'); I('s_cselect_b32 s55, s55, 0x%x' % BIG)
        I('s_cmp_gt_u32 s%d, 0' % S_C0); I('s_cselect_b32 s55, s55, 0x%x' % BIG)
        I('s_sub_u32 s55, s55, s54')
        I('v_mul_lo_u32 v26, v24, s55')
        I('v_add3_u32 v26, v26, s54, v25')
        I('s_mul_i32 s53, s53, %d' % ROWP)
        I('s_add_u32 m0, s53, %d' % (HB - 384))
        I('buffer_load_dwordx4 v26, %s, 0 offen lds' % srd(SRD_X), tag='edge')
    I('s_mov_b32 exec_hi, -1')
    for hr in range(3, 6): row(hr)
    stamp(a, cfg, 'i2')
    I('v_lshrrev_b32 v24, 5, v%d' % L)
    I('v_and_b32 v25, 31, v%d' % L)
    I('v_lshlrev_b32 v25, 2, v25')
    I('s_movk_i32 s53, %d' % (8 * 1536))
    I('v_mad_u32_u24 v66, v24, s53, v25')
    I('v_add_u32 v67, %d, v66' % (3 * 1536))
    I('v_add_u32 v68, %d, v66' % (6 * 1536))
    I('s_mul_i32 s58, s%d, 384' % S_W)
    w1q = []
    def mk(ks, i):
        def f():
            if i == 0 and ks > 0: I('s_add_u32 s58, s58, 24576')
            k = ks * 4 + i // 2
            if i % 2 == 0: dst = V_W10 + k + 1 if k < 47 else V_SPARE
            else: dst = V_W11 + k
            I('buffer_load_dword v%d, v%d, %s, s58 offen offset:%d' % (dst, 66 + i // 3, srd(SRD_W1), (i % 3) * 1536), tag='w1')
        return f
    for ks in range(12):
        for i in range(8): w1q.append(mk(ks, i))
    def w1issue(n):
        for _ in range(n):
            if w1q: w1q.pop(0)()
    permq = list(range(48))
    def perm1():
        k = permq.pop(0)
        A = V_W10 + k + 1 if k < 47 else V_SPARE
        B = V_W11 + k
        I('v_perm_b32 v%d, v%d, v%d, s%d' % (V_W10 + k, B, A, S_PLO))
        I('v_perm_b32 v%d, v%d, v%d, s%d' % (B, B, A, S_PHI))
    w1issue(24)
    stamp(a, cfg, 'i3')
    I('s_mov_b32 s%d, 0x05040100' % S_PLO)
    I('s_mov_b32 s%d, 0x07060302' % S_PHI)
    I('s_load_dwordx2 s[24:25], s[0:1], 48')
    I('s_load_dwordx2 s[28:29], s[0:1], 32')
    I('s_mov_b32 s26, %d' % XBYTES); I('s_mov_b32 s27, 0x20000')
    I('s_mov_b32 s30, 1536'); I('s_mov_b32 s31, 0x20000')
    I('s_mov_b32 s%d, 1.0' % S_ONE); I('s_mov_b32 s%d, 1.0' % (S_ONE + 1))
    I('s_mov_b32 s%d, 0x%x' % (S_AP, f2u(APRIME))); I('s_mov_b32 s%d, 0x%x' % (S_AP + 1, f2u(APRIME)))
    I('v_lshrrev_b32 v24, 5, v%d' % L)
    I('s_mul_i32 s53, s%d, 6' % S_W)
    I('v_add_u32 v24, s53, v24')
    I('s_movk_i32 s54, %d' % ROWP)
    I('v_mul_u32_u24 v28, s54, v21')
    for pi in range(5):
        if pi < 3: I('v_add_u32 v25, %d, v20' % pi)
        elif pi == 3: I('v_add_u32 v25, v20, v21')
        else: I('v_add_u32 v25, 2, v20')
        I('v_bfe_u32 v26, v25, 1, 3')
        I('v_mul_u32_u24 v25, s40, v25')
        if pi < 3: I('v_add3_u32 v25, v25, v28, %s' % 's59' if False else 'v_add_u32 v25, v25, v28')
        I('v_add_u32 v25, %d, v25' % (HB + (2 * ROWP if pi >= 3 else 0)))
        for cg in range(3):
            I('v_add_u32 v27, %d, v24' % (2 * cg))
            I('v_xor_b32 v27, v27, v26')
            I('v_lshl_add_u32 v%d, v27, 4, v25' % (48 + pi * 3 + cg))
    I('v_lshrrev_b32 v25, 5, v%d' % L)
    I('v_lshlrev_b32 v25, 9, v25')
    I('v_lshl_add_u32 v25, v20, 4, v25')
    I('v_lshl_add_u32 v25, v21, 3, v25')
    I('s_mul_i32 s53, s%d, 3072' % S_W)
    I('s_add_u32 s53, s53, %d' % HB)
    I('v_add_u32 v69, s53, v25')
    I('v_lshlrev_b32 v%d, 4, v%d' % (V_L16, L))
    I('s_lshl_b32 s53, s%d, 2' % S_W)
    I('v_add_u32 v70, s53, v%d' % V_L16)
    I('v_add_u32 v%d, %d, v%d' % (V_YA, HB, V_L16))
    I('v_add_u32 v%d, %d, v%d' % (V_YB, HB + 4 * ROWP, V_L16))
    I('s_lshl_b32 s53, s%d, 14' % S_W)
    I('s_add_u32 s53, s53, %d' % GB)
    I('v_add_u32 v%d, s53, v%d' % (V_GL, V_L16))
    I('v_and_b32 v25, 1, v20')
    I('v_lshlrev_b32 v25, 4, v25')
    I('v_mov_b32 v26, 0xffff')
    I('v_lshlrev_b32 v25, v25, v26')
    I('v_lshrrev_b32 v26, 5, v%d' % L)
    I('v_lshlrev_b32 v26, 2, v26')
    I('v_lshrrev_b32 v27, 1, v20')
    I('v_sub_u32 v26, v27, v26')
    for r in range(4):
        I('v_cmp_eq_u32 vcc, %d, v26' % r)
        I('v_cndmask_b32 v%d, 0, v25, vcc' % (16 + r))
    A_CA = 32
    stamp(a, cfg, 'i4')
    for f in range(15):
        I('v_lshl_or_b32 v%d, v%d, 16, v%d' % (f, f, f))
        for r in range(4):
            I('v_and_b32 v%d, v%d, v%d' % (28 + r, f, 16 + r))
        for r in range(4):
            I('v_accvgpr_write_b32 a%d, v%d' % (A_CA + 4 * f + r, 28 + r))
    stamp(a, cfg, 'i5')
    for hr in range(6, 9): row(hr)
    w1issue(9)
    stamp(a, cfg, 'pre')

    ACC = [0, 24]
    ring = [0]
    NR = 8
    VB = lambda pi, cg: 48 + pi * 3 + cg
    def bread(t, pxg, cg, pi):
        slot = ring[0] % NR; ring[0] += 1
        tt = t if t < 5 else t - 5
        I('ds_read_b128 a[%d:%d], v%d offset:%d' % (A_RING + 4 * slot, A_RING + 4 * slot + 3, VB(pi, cg), tt * ROWP + pxg * 6144), tag='cb')
        return slot
    seq = [(pxg, cg, pi) for pxg in range(2) for cg in range(3) for pi in range(5)]
    INV = 1.0 / 192
    def ln_finish(t):
        acc = ACC[t % 2]; buf = (t % 2) * 1024
        F = []
        F.append(lambda: I('ds_read_b128 v[76:79], v%d offset:%d' % (V_L16, buf)))
        F.append(lambda: I('v_add_f32 v76, v76, v77'))
        F.append(lambda: I('v_add_f32 v78, v78, v79'))
        F.append(lambda: I('v_add_f32 v76, v76, v78'))
        F.append(lambda: I('v_mov_b32 v77, v76'))
        F.append(lambda: I('v_permlane16_swap_b32 v76, v77'))
        F.append(lambda: I('v_mul_f32 v76, 0x%x, v76' % f2u(INV)))
        F.append(lambda: I('v_mul_f32 v78, v76, v76'))
        F.append(lambda: I('v_fma_f32 v77, v77, s59, -v78'))
        F.append(lambda: I('v_max_f32 v77, 0, v77'))
        F.append(lambda: I('v_add_f32 v77, 0x%x, v77' % f2u(1e-5)))
        F.append(lambda: I('v_rsq_f32 v77, v77'))
        F.append(lambda: I('v_mul_f32 v80, 0x%x, v77' % f2u(ALPHA)))
        F.append(lambda: I('v_mul_f32 v82, v76, v80'))
        F.append(lambda: I('v_mov_b32 v81, v80'))
        F.append(lambda: I('v_mov_b32 v83, v82'))
        F.append(lambda: I('v_permlane32_swap_b32 v80, v81'))
        F.append(lambda: I('v_permlane32_swap_b32 v82, v83'))
        for pxg in range(2):
            for cg in range(3):
                b = acc + (pxg * 3 + cg) * 4
                for i in range(4):
                    F.append(lambda b=b, i=i, pxg=pxg: I('v_fma_f32 v%d, v%d, v%d, -v%d' % (b + i, b + i, 80 + pxg, 82 + pxg)))
                F.append(lambda b=b: I('v_cvt_pk_bf16_f32 v%d, v%d, v%d' % (b, b, b + 1)))
                F.append(lambda b=b: I('v_cvt_pk_bf16_f32 v%d, v%d, v%d' % (b + 1, b + 2, b + 3)))
                tt = t if t < 5 else t - 5
                F.append(lambda b=b, tt=tt, cg=cg, pxg=pxg: I('ds_write_b64 v69, v[%d:%d] offset:%d' % (b, b + 1, tt * ROWP + cg * 1024 + pxg * 256), tag='yw'))
        return F
    def psum(t, pxg, cg):
        acc = ACC[t % 2]; b = acc + (pxg * 3 + cg) * 4
        sa, sb = 72 + 2 * pxg, 73 + 2 * pxg
        F = []
        for i in range(4):
            if cg == 0 and i == 0:
                F.append(lambda: I('v_add_f32 v%d, v%d, v%d' % (sa, b, b + 1)))
                F.append(lambda: I('v_mul_f32 v%d, v%d, v%d' % (sb, b, b)))
            else:
                if not (cg == 0 and i == 1):
                    F.append(lambda i=i: I('v_add_f32 v%d, v%d, v%d' % (sa, sa, b + i)))
                F.append(lambda i=i: I('v_fmac_f32 v%d, v%d, v%d' % (sb, b + i, b + i)))
        return F
    def stats_out(t):
        buf = (t % 2) * 1024
        I('v_permlane32_swap_b32 v72, v74')
        I('v_permlane32_swap_b32 v73, v75')
        I('v_add_f32 v72, v72, v74')
        I('v_add_f32 v73, v73, v75')
        I('v_permlane16_swap_b32 v72, v73')
        I('v_add_f32 v72, v72, v73')
        I('ds_write_b32 v70, v72 offset:%d' % buf, tag='st')
    I('s_mov_b32 s59, 0x%x' % f2u(INV))
    w1plan = {0: 12, 1: 3, 2: 3, 3: 27, 4: 3, 5: 3, 6: 99}
    permplan = {3: 12, 6: 12}
    PRE = 3
    for t in range(7):
        a.comment('conv row %d' % t)
        stamp(a, cfg, 'c%d' % t)
        if t == 5:
            for r in range(48, 63): I('v_add_u32 v%d, %d, v%d' % (r, 5 * ROWP, r))
        slots = []
        if t > 0:
            for k in range(PRE): slots.append(bread(t, *seq[k]))
        a.wait_both(vmtags=['row%d' % (t + 2), 'edge'] if t == 0 else ['row%d' % (t + 2)], lgtags=['st'])
        I('s_barrier')
        stamp(a, cfg, 'b%d' % t)
        fill = ln_finish(t - 1) if t > 0 else []
        if t == 6: fill.insert(18, lambda: I('v_add_u32 v69, %d, v69' % (5 * ROWP)))
        for _ in range(w1plan.get(t, 0)):
            if w1q: fill.append(w1q.pop(0))
        for _ in range(permplan.get(t, 0)): fill.append(perm1)
        while len(slots) < 6: slots.append(bread(t, *seq[len(slots)]))
        nfill = len(fill)
        per = max(1, math.ceil((nfill + 30) / 28.0))
        for k, (pxg, cg, pi) in enumerate(seq):
            d = ACC[t % 2] + (pxg * 3 + cg) * 4
            s_ = slots[k]
            c = '0' if pi == 0 else 'v[%d:%d]' % (d, d + 3)
            I('v_mfma_f32_16x16x32_bf16 v[%d:%d], a[%d:%d], a[%d:%d], %s' % (d, d + 3, A_CA + 4 * (pi * 3 + cg), A_CA + 4 * (pi * 3 + cg) + 3, A_RING + 4 * s_, A_RING + 4 * s_ + 3, c))
            if len(slots) < 30: slots.append(bread(t, *seq[len(slots)]))
            if pi == 2 and k >= 5:
                pp, pc, _ = seq[k - 5]
                fill += psum(t, pp, pc)
            for _ in range(per):
                if fill: fill.pop(0)()
        while fill: fill.pop(0)()
        for f in psum(t, 1, 2): f()
        stats_out(t)
    a.wait_lg('st')
    I('s_barrier')
    for f in ln_finish(6): f()
    while permq: perm1()
    a.wait_lg(n=0)
    I('s_barrier')
    stamp(a, cfg, 'pro')

def gen_dump_y(a):
    I = a.I
    I('s_mul_i32 s40, s2, 86016')
    I('s_add_u32 s40, s40, %d' % WS_DUMP)
    I('s_mul_i32 s41, s%d, 3072' % S_W)
    I('s_add_u32 s40, s40, s41')
    I('s_add_u32 s41, s41, %d' % HB)
    I('v_add_u32 v1, s41, v%d' % V_L16)
    for t in range(7):
        for j in range(3):
            I('ds_read_b128 v[4:7], v1 offset:%d' % (j * 1024))
            I('buffer_store_dwordx4 v[4:7], v%d, %s, s40 offen offset:%d' % (V_L16, srd(SRD_WS), j * 1024))
            a.wait_vm(n=0)
        I('v_add_u32 v1, %d, v1' % ROWP)
        I('s_add_u32 s40, s40, 12288')
    I('s_mul_i32 s40, s%d, 24576' % S_W)
    I('s_add_u32 s40, s40, %d' % (WS_DUMP + 0x1400000))
    I('s_cmp_lg_u32 s2, 0')
    I('s_cbranch_scc1 L_end')
    for k in range(24):
        I('buffer_store_dwordx4 v[%d:%d], v%d, %s, s40 offen' % (V_W10 + 4 * k, V_W10 + 4 * k + 3, V_L16, srd(SRD_WS)))
        I('s_add_u32 s40, s40, 1024')

def gen_helper(a, cfg):
    I = a.I
    a.sect = 'helper'
    a.forget()
    a.label('L_helper')
    L = V_LANE
    I('s_cmp_ge_u32 s2, %d' % (NMAIN + NH))
    I('s_cbranch_scc1 L_end')
    I('s_load_dwordx2 s[24:25], s[0:1], 24')
    I('s_load_dwordx2 s[44:45], s[0:1], 40')
    I('s_mov_b32 s26, %d' % (768 * 192 * 2)); I('s_mov_b32 s27, 0x20000')
    I('s_sub_u32 s40, s2, %d' % NMAIN)
    I('v_lshlrev_b32 v%d, 4, v%d' % (V_L16, L))
    if cfg.prefetch_code:
        I('s_getpc_b64 s[46:47]')
        a.label('L_pc')
        I('s_sub_u32 s46, s46, L_pc-%s_kernel' % NAME)
        I('s_subb_u32 s47, s47, 0')
        I('s_lshl_b32 s48, s%d, 10' % S_W)
        I('v_add_u32 v2, s48, v%d' % V_L16)
        I('s_mov_b32 s48, (L_code_end-%s_kernel)/4096' % NAME)
        a.label('L_pf')
        I('global_load_dwordx4 v[252:255], v2, s[46:47]')
        a.vmq = []
        I('v_add_u32 v2, 4096, v2')
        I('s_sub_u32 s48, s48, 1')
        I('s_cmp_lg_u32 s48, 0')
        I('s_cbranch_scc1 L_pf')
    I('s_waitcnt lgkmcnt(0)'); a.forget()
    I('s_cmp_ge_u32 s40, 24')
    I('s_cbranch_scc1 L_hb')
    I('s_mul_i32 s41, s40, 43'); I('s_lshr_b32 s41, s41, 8')
    I('s_mul_i32 s42, s41, 6'); I('s_sub_u32 s42, s40, s42')
    I('s_mul_i32 s43, s41, 192')
    I('s_lshr_b32 s46, s42, 1'); I('s_lshl_b32 s46, s46, 6'); I('s_add_u32 s43, s43, s46')
    I('s_and_b32 s46, s42, 1'); I('s_add_u32 s43, s43, s46')
    I('v_lshrrev_b32 v10, 5, v%d' % L)
    I('v_and_b32 v11, 31, v%d' % L)
    I('s_movk_i32 s46, 3072')
    I('v_lshlrev_b32 v12, 1, v11')
    I('v_mad_u32_u24 v12, v10, s46, v12')
    I('s_lshl_b32 s46, s%d, 4' % S_W)
    I('s_add_u32 s46, s46, s43')
    I('s_mul_i32 s46, s46, 384')
    for cb in range(6):
        for i4 in range(4):
            I('buffer_load_ushort v%d, v12, %s, s46 offen offset:%d' % (16 + cb * 4 + i4, srd(24), i4 * 768 + cb * 64))
    I('s_movk_i32 s47, %d' % (8 * 1536))
    I('v_lshlrev_b32 v13, 2, v11')
    I('v_mad_u32_u24 v13, v10, s47, v13')
    I('s_mul_i32 s47, s%d, %d' % (S_W, 48 * 1536))
    I('s_lshl_b32 s48, s43, 1')
    I('s_add_u32 s47, s47, s48')
    for k in range(3):
        for i in range(8):
            I('buffer_load_ushort v%d, v13, %s, s47 offen' % (40 + k * 8 + i, srd(SRD_W1)))
            I('s_add_u32 s47, s47, %d' % (1536 if i < 7 else 9 * 1536))
    I('s_mul_i32 s46, s41, 147456')
    I('s_lshl_b32 s48, s42, 12'); I('s_add_u32 s46, s46, s48')
    I('s_lshl_b32 s48, s%d, 10' % S_W); I('s_add_u32 s46, s46, s48')
    I('s_add_u32 s46, s46, %d' % WS_W2)
    for cb in range(6):
        for i4 in range(4): I('v_lshlrev_b32 v%d, 16, v%d' % (16 + cb * 4 + i4, 16 + cb * 4 + i4))
        I('buffer_store_dwordx4 v[%d:%d], v%d, %s, s46 offen sc1' % (16 + cb * 4, 19 + cb * 4, V_L16, srd(SRD_WS)))
        I('s_add_u32 s46, s46, 24576')
    I('s_mul_i32 s46, s40, 12288')
    I('s_mul_i32 s48, s%d, 3072' % S_W); I('s_add_u32 s46, s46, s48')
    for k in range(3):
        for r in range(4):
            I('v_lshl_or_b32 v%d, v%d, 16, v%d' % (64 + k * 4 + r, 40 + k * 8 + 2 * r + 1, 40 + k * 8 + 2 * r))
        I('buffer_store_dwordx4 v[%d:%d], v%d, %s, s46 offen offset:%d sc1' % (64 + k * 4, 67 + k * 4, V_L16, srd(SRD_WS), WS_W1 + k * 1024))
    I('s_branch L_hdone')
    a.forget()
    a.label('L_hb')
    I('s_cmp_ge_u32 s40, 28')
    I('s_cbranch_scc1 L_hz')
    I('s_sub_u32 s41, s40, 24')
    I('s_mul_i32 s42, s41, 192'); I('s_mul_i32 s43, s%d, 48' % S_W); I('s_add_u32 s42, s42, s43')
    I('s_lshl_b32 s43, s42, 1')
    I('s_add_u32 s44, s44, s43'); I('s_addc_u32 s45, s45, 0')
    I('s_load_dwordx8 s[72:79], s[44:45], 0')
    I('s_load_dwordx8 s[80:87], s[44:45], 32')
    I('s_load_dwordx8 s[88:95], s[44:45], 64')
    I('s_mul_i32 s42, s42, 384')
    I('v_lshlrev_b32 v12, 3, v%d' % L)
    I('v_cmp_gt_u32 vcc, 48, v%d' % L)
    I('v_mov_b32 v13, 0x%x' % BIG)
    I('v_cndmask_b32 v12, v13, v12, vcc')
    for r in range(48):
        I('buffer_load_dwordx2 v[%d:%d], v12, %s, s42 offen offset:%d' % (104 + 2 * r, 105 + 2 * r, srd(24), (r % 8) * 384))
        if r % 8 == 7: I('s_add_u32 s42, s42, 3072')
    for i in range(4): I('v_mov_b32 v%d, 0' % (4 + i))
    for r in range(48):
        sreg = 72 + r // 2
        if r % 2 == 0: I('s_lshl_b32 s46, s%d, 16' % sreg)
        else: I('s_and_b32 s46, s%d, 0xffff0000' % sreg)
        for d in range(2):
            I('v_lshlrev_b32 v8, 16, v%d' % (104 + 2 * r + d))
            I('v_and_b32 v9, 0xffff0000, v%d' % (104 + 2 * r + d))
            I('v_fmac_f32 v%d, s46, v8' % (4 + 2 * d))
            I('v_fmac_f32 v%d, s46, v9' % (5 + 2 * d))
    I('s_lshl_b32 s46, s%d, 10' % S_W)
    I('v_add_u32 v10, s46, v%d' % V_L16)
    I('ds_write_b128 v10, v[4:7]')
    a.wait_lg(n=0)
    I('s_barrier')
    for k in range(4): I('ds_read_b128 v[%d:%d], v%d offset:%d' % (16 + 4 * k, 19 + 4 * k, V_L16, k * 1024))
    for k in range(1, 4):
        for i in range(4): I('v_add_f32 v%d, v%d, v%d' % (16 + i, 16 + i, 16 + 4 * k + i))
    I('v_cndmask_b32 v12, v13, v%d, vcc' % V_L16)
    I('s_mul_i32 s46, s41, 768')
    I('s_add_u32 s46, s46, %d' % WS_BIAS)
    I('s_cmp_lg_u32 s%d, 0' % S_W)
    I('s_cbranch_scc1 L_hdone')
    I('buffer_store_dwordx4 v[16:19], v12, %s, s46 offen sc1' % srd(SRD_WS))
    I('s_branch L_hdone')
    a.forget()
    a.label('L_hz')
    nz = cfg.R * 3072 + 4096
    assert nz % 4096 == 0
    for i in range(4): I('v_mov_b32 v%d, 0' % (4 + i))
    I('s_lshl_b32 s46, s%d, 10' % S_W)
    I('s_add_u32 s46, s46, %d' % WS_SUM)
    for k in range(nz // 4096):
        I('buffer_store_dwordx4 v[4:7], v%d, %s, s46 offen sc1' % (V_L16, srd(SRD_WS)))
        I('s_add_u32 s46, s46, 4096')
    a.label('L_hdone')
    I('s_waitcnt vmcnt(0) lgkmcnt(0)'); a.forget()
    I('s_barrier')
    I('s_cmp_lg_u32 s%d, 0' % S_W)
    I('s_cbranch_scc1 L_end')
    I('v_mov_b32 v4, 1')
    I('v_mov_b32 v5, 0')
    I('s_mov_b64 exec, 1')
    I('buffer_atomic_add v4, v5, %s, 0 offen sc1' % srd(SRD_DBG))
    a.label('L_end')
    I('s_endpgm')

def gen_stamps_out(a, cfg, n):
    I = a.I
    I('s_memrealtime s[100:101]')
    I('s_waitcnt lgkmcnt(0)'); a.smem_pending = set()
    I('s_lshl_b32 s40, s2, 2'); I('s_add_u32 s40, s40, s%d' % S_W); I('s_lshl_b32 s40, s40, 6')
    I('s_add_u32 s40, s40, %d' % WS_STAMP)
    I('v_mov_b32 v1, 0')
    I('s_mov_b64 exec, 1')
    for k in list(range(n)) + [9, 10]:
        I('v_mov_b32 v2, s%d' % (S_STAMP + 2 * k))
        I('buffer_store_dword v2, v1, %s, s40 offen offset:%d' % (srd(SRD_WS), 4 * k))
    I('s_mov_b64 exec, -1')

def build(cfg):
    a = Asm()
    if cfg.stop == 'entry': a.I('s_endpgm')
    gen_entry(a, cfg)
    gen_prologue(a, cfg)
    if cfg.stop == 'pro':
        if cfg.stamps: gen_stamps_out(a, cfg, len(cfg.stamps))
        gen_dump_y(a)
        a.I('s_branch L_end')
    else:
        import gen2
        gen2.gen_main(a, cfg)
    gen_helper(a, cfg)
    head = open('cdna_kernels/%s.s.ref' % NAME).read().split('; Override')[0] if False else ''
    src = '; generated by gen/gen.py\n'
    src += '; @launch grid=(%d,1,1) block=(256,1,1) lds=%d\n' % (NMAIN + NH, LDS_BYTES)
    src += '.amdgcn_target "amdgcn-amd-amdhsa--gfx950"\n.text\n.globl %s_kernel\n.p2align 8\n.type %s_kernel,@function\n%s_kernel:\n' % (NAME, NAME, NAME)
    src += a.text()
    src += 'L_code_end:\n'
    src += '''.section .rodata,"a"
.p2align 6
.amdhsa_kernel %s_kernel
  .amdhsa_next_free_vgpr 512
  .amdhsa_next_free_sgpr 102
  .amdhsa_accum_offset 256
  .amdhsa_group_segment_fixed_size 0
  .amdhsa_kernarg_size 72
  .amdhsa_user_sgpr_count 2
  .amdhsa_user_sgpr_kernarg_segment_ptr 1
  .amdhsa_system_sgpr_workgroup_id_x 1
.end_amdhsa_kernel
''' % NAME
    return src, a

if __name__ == '__main__':
    sys.modules['gen'] = sys.modules['__main__']
    cfg = Cfg()
    out = sys.argv[1] if len(sys.argv) > 1 else 'cdna_kernels/%s.s' % NAME
    for kv in sys.argv[2:]:
        k, v = kv.split('=')
        setattr(cfg, k, eval(v))
    if cfg.stamps is True: cfg.stamps = ['start', 'pre', 'pro', 'p1', 'sync', 's', 'end']
    if isinstance(cfg.stamps, str): cfg.stamps = cfg.stamps.split(',')
    src, a = build(cfg)
    open(out, 'w').write(src)
    print('instrs', a.count(), 'bytes', len(src), 'nops', dict(a.nops), 'waits', dict(a.nwaits))
```

```python
from asmlib import *
import gen as G
from gen import *

def gdest(eb, t):
    if eb == 0: return ('l', t)
    if eb == 1 and t == 0: return ('l', 7)
    if eb == 1: return ('v', 104 + 8 * (t - 1))
    if eb == 2: return ('v', 152 + 8 * t)
    if eb == 3: return ('a', 128 + 8 * t)
    if eb == 4: return ('a', 184 + 8 * t)
    return ('a', 240 + 8 * t) if t < 2 else ('a', 32 + 8 * (t - 2))
def w1reg(eb, ks):
    if eb == 0: return vr(V_W10 + 4 * ks, 4)
    if eb == 1: return vr(V_W11 + 4 * ks, 4)
    return ar((A_W1A if eb % 2 == 0 else A_W1B) + 4 * ks, 4)

STB2 = 40960
CNT_OFF = None
V_FLAG, V_SA = 102, 103
FA, FB = 0, 48
V_EW, V_ER, V_OUT, V_XL = 97, 98, 99, 102
V_S, V_RAW, V_TMP = 208, 216, 240
A_ACC = [0, 16]
A_BIAS = [72, 112]
A_X, A_ID, A_GL = 88, 100, 104
KORD = [11, 6, 7, 8, 9, 10, 4, 5, 2, 3, 0, 1]
SPIN_MAX = 1 << 18

def raw0_reg(ks, hr):
    if ks in (6, 7, 8): return V_RAW + (ks - 6) * 8 + 4 * hr
    if ks in (9, 10): return V_TMP + (ks - 9) * 8 + 4 * hr
    if ks == 11: return FA + 40 + 4 * hr
    return FB + ks * 8 + 4 * hr

def gen_main(a, cfg):
    I = a.I
    L = V_LANE
    ws = srd(SRD_WS)
    cnt_off = WS_SUM + cfg.R * 3072
    a.sect = 'p1'
    I('s_mul_i32 s40, s%d, 224' % S_R0)
    I('s_add_u32 s40, s40, s%d' % S_C0)
    I('s_mul_i32 s%d, s40, 384' % S_ROW)
    for t in range(1, 7): I('s_add_u32 s%d, s%d, %d' % (S_ROW + t, S_ROW + t - 1, 224 * 384))
    I('s_and_b32 s40, s2, %d' % (cfg.R - 1))
    I('s_mul_i32 s40, s40, 3072')
    I('s_mul_i32 s41, s%d, 768' % S_W)
    I('s_add_u32 s40, s40, s41')
    I('s_add_u32 s%d, s40, %d' % (S_AT, WS_SUM))
    I('s_mul_i32 s%d, s%d, 73728' % (S_W1F, S_W))
    I('s_mul_i32 s%d, s%d, 147456' % (S_W2, S_W))
    I('s_add_u32 s%d, s%d, %d' % (S_W2, S_W2, WS_W2))
    I('s_mov_b32 s6, 0xaaaaaaaa'); I('s_mov_b32 s7, 0xaaaaaaaa')
    I('v_and_b32 v%d, 0x19, v%d' % (V_AT, L))
    I('v_lshrrev_b32 v102, 5, v%d' % L)
    I('v_lshl_or_b32 v%d, v102, 2, v%d' % (V_AT, V_AT))
    I('v_lshrrev_b32 v102, 1, v%d' % L)
    I('v_and_b32 v102, 2, v102')
    I('v_or_b32 v%d, v%d, v102' % (V_AT, V_AT))
    I('v_lshlrev_b32 v%d, 2, v%d' % (V_AT, V_AT))
    I('v_and_b32 v102, 2, v%d' % L)
    I('v_lshlrev_b32 v102, 30, v102')
    I('v_or_b32 v%d, v%d, v102' % (V_AT, V_AT))
    I('buffer_load_dword v%d, off, %s, 0 sc1' % (V_FLAG, srd(SRD_DBG)), tag='flag')

    X = lambda n: V_X + 16 * (n % 3)
    Z = lambda n: V_Z + 16 * (n % 2)
    NS = 42
    def yread(q):
        n, ks = divmod(q, 12)
        if n >= NS: return
        t = n % 7
        base, off = (V_YA, t * ROWP) if t < 4 else (V_YB, (t - 4) * ROWP)
        I('ds_read_b128 %s, v%d offset:%d' % (ar(A_RING + 4 * (q % 8), 4), base, off + ks * 1024), tag='y%d' % q)
    def Treg(n): return 152 if n <= 7 else 208
    for q in range(7): yread(q)
    vm = {}
    def w1f_load(eb, ks):
        def f():
            if ks % 4 == 0: I('s_add_u32 s40, s%d, %d' % (S_W1F, WS_W1 + eb * 12288 + ks * 1024))
            I('buffer_load_dwordx4 %s, v%d, %s, s40 offen offset:%d sc1' % (w1reg(eb, ks), V_L16, ws, (ks % 4) * 1024), tag='w1f%d' % eb)
        return f
    for eb, st in ((2, 4), (3, 10), (4, 21), (5, 28)):
        for ks in range(12): vm.setdefault(st + ks // 2, []).append(w1f_load(eb, ks))
    def raw_load(cb, ks, hr, dst, sreg=41):
        def f():
            if hr == 0 or True:
                I('s_add_u32 s%d, s%d, %d' % (sreg, S_W2, cb * 24576 + ks * 2048))
            I('buffer_load_dwordx4 %s, v%d, %s, s%d offen offset:%d sc1' % (vr(dst, 4), V_L16, ws, sreg, hr * 1024), tag='raw%d_%d_%d' % (cb, ks, hr))
        return f
    def raw_pair(cb, ks, d0, d1, sreg=41):
        def f():
            I('s_add_u32 s%d, s%d, %d' % (sreg, S_W2, cb * 24576 + ks * 2048))
            I('buffer_load_dwordx4 %s, v%d, %s, s%d offen sc1' % (vr(d0, 4), V_L16, ws, sreg), tag='raw%d_%d_0' % (cb, ks))
            I('buffer_load_dwordx4 %s, v%d, %s, s%d offen offset:1024 sc1' % (vr(d1, 4), V_L16, ws, sreg), tag='raw%d_%d_1' % (cb, ks))
        return f
    if cfg.w2warm:
        def warm(k):
            def f():
                if k == 0:
                    I('s_lshr_b32 s42, s2, 3'); I('s_lshl_b32 s42, s42, 2'); I('s_add_u32 s42, s42, s%d' % S_W)
                    I('s_mul_i32 s42, s42, 6144'); I('s_add_u32 s42, s42, %d' % WS_W2)
                    I('s_min_u32 s42, s42, %d' % (WS_W2 + 4 * 147456 - 6144))
                if k == 4: I('s_add_u32 s42, s42, 4096')
                I('buffer_load_dwordx4 %s, v%d, %s, s42 offen offset:%d sc1' % (vr(V_RAW, 4), V_L16, ws, (k % 4) * 1024), tag='warm')
            return f
        for k in range(6): vm.setdefault(16 + k // 2, []).append(warm(k))
    for i, ks in enumerate((6, 7, 8, 9, 10)):
        vm.setdefault(35 + i, []).append(raw_pair(0, ks, raw0_reg(ks, 0), raw0_reg(ks, 1)))

    def sq_reduce(eb):
        S = V_SQ
        for k in range(8): I('v_permlane16_swap_b32 v%d, v%d' % (S + k, S + k + 8))
        for k in range(0, 8, 2): I('v_pk_add_f32 %s, %s, %s' % (vr(S + k, 2), vr(S + k, 2), vr(S + k + 8, 2)))
        for k in range(4): I('v_add_f32_dpp v%d, v%d, v%d row_ror:8 row_mask:0xf bank_mask:0x3' % (S + k, S + k, S + k))
        for k in range(4): I('v_add_f32_dpp v%d, v%d, v%d row_ror:8 row_mask:0xf bank_mask:0xc' % (S + k, S + k + 4, S + k + 4))
        for k in range(2): I('v_add_f32_dpp v%d, v%d, v%d row_half_mirror row_mask:0xf bank_mask:0x5' % (S + k, S + k, S + k))
        for k in range(2): I('v_add_f32_dpp v%d, v%d, v%d row_half_mirror row_mask:0xf bank_mask:0xa' % (S + k, S + k + 2, S + k + 2))
        I('v_cndmask_b32 v%d, v%d, v%d, s[6:7]' % (S + 2, S, S + 1))
        I('v_cndmask_b32 v%d, v%d, v%d, s[6:7]' % (S + 3, S + 1, S))
        I('v_add_f32_dpp v%d, v%d, v%d quad_perm:[1,0,3,2] row_mask:0xf bank_mask:0xf' % (S + 2, S + 3, S + 2))
        I('v_add_f32_dpp v%d, v%d, v%d quad_perm:[2,3,0,1] row_mask:0xf bank_mask:0xf' % (S + 4, S + 2, S + 2))
        I('buffer_atomic_add_f32 v%d, v%d, %s, s%d offen offset:%d' % (S + 4, V_AT, ws, S_AT, eb * 128), tag='atom')

    def cvt(n):
        eb, t = divmod(n, 7); k, r = gdest(eb, t)
        d = r if k == 'v' else Treg(n)
        for j in range(8): I('v_cvt_pk_bf16_f32 v%d, v%d, v%d' % (d + j, X(n) + 2 * j, X(n) + 2 * j + 1))
    def moves(n):
        if n < 0 or n >= NS: return [], []
        eb, t = divmod(n, 7); k, r = gdest(eb, t); T = Treg(n)
        if k == 'a': return [(lambda j=j: I('v_accvgpr_write_b32 a%d, v%d' % (r + j, T + j))) for j in range(8)], []
        if k == 'l': return [], [(lambda f=f: I('ds_write_b128 v%d, %s offset:%d' % (V_GL, vr(T + 4 * f, 4), r * 2048 + f * 1024), tag='gw')) for f in range(2)]
        return [], []

    for n in range(NS + 2):
        eb, t = divmod(n, 7)
        a.comment('W %d' % n); stamp(a, cfg, 'W%d' % n)
        TR = []
        if 0 <= n - 1 < NS: TR += [(lambda i=i: I('v_exp_f32 v%d, v%d' % (Z(n - 1) + i, Z(n - 1) + i))) for i in range(16)]
        if 0 <= n - 2 < NS: TR += [(lambda i=i: I('v_rcp_f32 v%d, v%d' % (Z(n - 2) + i, Z(n - 2) + i))) for i in range(16)]
        acw, dsw = moves(n - 3)
        vl = vm.get(n, [])
        if n < NS:
            if t == 0 and eb >= 2: a.wait_vm('w1f%d' % eb)
            for ks in range(12):
                q = 12 * n + ks
                if ks in cfg.ywaits: a.wait_lg('y%d' % (12 * n + cfg.ywaits[ks]))
                I('v_mfma_f32_32x32x16_bf16 %s, %s, %s, %s' % (vr(X(n), 16), w1reg(eb, ks), ar(A_RING + 4 * (q % 8), 4), '0' if ks == 0 else vr(X(n), 16)))
                yread(q + 7)
                if ks in (2, 5) and dsw: dsw.pop(0)()
                if ks in (8, 11) and vl: vl.pop(0)()
                for _ in range(2 if ks % 3 == 2 else 3):
                    if TR: TR.pop(0)()
                if ks % 3 == 2:
                    for _ in range(2):
                        if acw: acw.pop(0)()
            assert not vl
        for f in TR + acw + dsw: f()
        a.comment('P %d' % n); stamp(a, cfg, 'P%d' % n)
        if n == 3:
            a.wait_vm('flag')
            I('v_readfirstlane_b32 s4, v%d' % V_FLAG)
            I('s_cmp_lg_u32 s4, %d' % NH)
            I('s_cbranch_scc1 L_slow1')
            a.label('L_back1')
        if 0 <= n - 1 < NS:
            for j in range(0, 16, 2): I('v_pk_add_f32 %s, %s, s[%d:%d]' % (vr(Z(n - 1) + j, 2), vr(Z(n - 1) + j, 2), S_ONE, S_ONE + 1))
        m = n - 2
        if 0 <= m < NS:
            for j in range(0, 16, 2): I('v_pk_mul_f32 %s, %s, %s' % (vr(X(m) + j, 2), vr(X(m) + j, 2), vr(Z(m) + j, 2)))
            for j in range(0, 16, 2):
                if m % 7 == 0: I('v_pk_mul_f32 %s, %s, %s' % (vr(V_SQ + j, 2), vr(X(m) + j, 2), vr(X(m) + j, 2)))
                else: I('v_pk_fma_f32 %s, %s, %s, %s' % (vr(V_SQ + j, 2), vr(X(m) + j, 2), vr(X(m) + j, 2), vr(V_SQ + j, 2)))
            if m == NS - 1: sq_reduce(5)
            cvt(m)
        if n < NS:
            for j in range(0, 16, 2): I('v_pk_fma_f32 %s, %s, %s, s[%d:%d]' % (vr(Z(n) + j, 2), vr(X(n) + j, 2), vr(X(n) + j, 2), S_AP, S_AP + 1))
            for j in range(0, 16, 2): I('v_pk_mul_f32 %s, %s, %s neg_lo:[1,0] neg_hi:[1,0]' % (vr(Z(n) + j, 2), vr(X(n) + j, 2), vr(Z(n) + j, 2)))
        if 0 <= m < NS - 1 and m % 7 == 6: sq_reduce(m // 7)
    for f in moves(NS - 1)[0]: f()
    stamp(a, cfg, 'p1')

    a.sect = 'sync'
    for ks in (11, 4, 5, 2, 3, 0, 1): raw_pair(0, ks, raw0_reg(ks, 0), raw0_reg(ks, 1))()
    I('v_lshrrev_b32 v4, 5, v%d' % L)
    I('v_and_b32 v5, 31, v%d' % L)
    I('s_movk_i32 s42, 384')
    I('s_lshl_b32 s43, s%d, 4' % S_W)
    I('v_mul_u32_u24 v%d, s42, v5' % V_XL)
    I('v_lshlrev_b32 v6, 31, v4')
    I('v_add3_u32 v%d, v%d, s43, v6' % (V_XL, V_XL))
    def xload(j):
        if j >= 42: return
        cb, t = divmod(j, 7)
        if 'x' in getattr(cfg, 'abl', '').split('+') and j > 1: return
        I('buffer_load_dwordx4 %s, v%d, %s, s%d offen offset:%d%s' % (ar(A_X + 4 * (j % 3), 4), V_XL, srd(SRD_X), S_ROW + t, cb * 64, cfg.x2fl), tag='x%d' % j)
    xload(0); xload(1)
    I('v_lshlrev_b32 v7, 4, v4')
    I('s_mul_i32 s44, s%d, 768' % S_W)
    I('s_add_u32 s44, s44, %d' % WS_BIAS)
    I('v_mov_b32 v%d, v7' % L)
    V_BO = L
    def bias_load(cb, g):
        I('buffer_load_dwordx4 %s, v%d, %s, s44 offen offset:%d sc1' % (ar(A_BIAS[cb % 2] + 4 * g, 4), V_BO, ws, cb * 128 + g * 32), tag='bias%d' % cb)
    for g in range(4): bias_load(0, g)
    I('v_lshrrev_b32 v8, 4, v%d' % V_L16)
    I('v_lshrrev_b32 v9, 4, v8')
    I('v_lshlrev_b32 v9, 7, v9')
    I('v_and_b32 v10, 7, v8')
    I('v_lshl_add_u32 v9, v10, 4, v9')
    I('s_mul_i32 s45, s%d, 384' % S_W)
    I('buffer_load_dwordx4 v[0:3], v9, %s, s45 offen' % srd(SRD_GAM), tag='gam')
    stamp(a, cfg, 'sy0')
    a.wait_vm('atom')
    stamp(a, cfg, 'sy1')
    I('s_barrier')
    stamp(a, cfg, 'sy2')
    I('s_cmp_lg_u32 s%d, 0' % S_W)
    I('s_cbranch_scc1 L_nopoll')
    save = (list(a.vmq), list(a.lgq))
    I('s_and_b32 s46, s2, 7')
    I('s_lshl_b32 s46, s46, 8')
    I('s_add_u32 s46, s46, %d' % cnt_off)
    I('v_mov_b32 v11, 1')
    I('v_lshlrev_b32 v12, 8, v8')
    I('s_mov_b64 exec, 1')
    I('buffer_atomic_add v11, off, %s, s46 sc1' % ws)
    I('s_mov_b64 exec, 0xff')
    I('s_mov_b32 s46, %d' % cnt_off)
    I('s_mov_b32 s4, %d' % SPIN_MAX)
    a.label('L_poll')
    I('buffer_load_dword v11, v12, %s, s46 offen sc1' % ws)
    I('s_waitcnt vmcnt(0)'); a.vmq = []
    I('v_cmp_ne_u32 vcc, 28, v11')
    I('s_sub_u32 s4, s4, 1')
    I('s_cbranch_scc1 L_polled')
    I('s_cbranch_vccnz L_poll')
    a.label('L_polled')
    if cfg.marks:
        I('s_mov_b64 exec, 1')
        I('v_mov_b32 v11, s4')
        I('v_mov_b32 v12, 1')
        I('v_cmp_eq_u32 vcc, -1, v11')
        I('s_and_b64 exec, vcc, exec')
        I('buffer_atomic_add v12, off, %s, 0 offset:12 sc1' % srd(SRD_DBG))
        a.vmq = []
    I('s_mov_b64 exec, -1')
    a.label('L_nopoll')
    stamp(a, cfg, 'sy3')
    a.vmq, a.lgq = save
    I('s_mul_i32 s46, s%d, 4608' % S_W)
    I('s_add_u32 s46, s46, %d' % EXB)
    I('s_movk_i32 s47, 576')
    I('v_mul_u32_u24 v%d, s47, v4' % V_EW)
    I('v_lshl_add_u32 v%d, v5, 4, v%d' % (V_EW, V_EW))
    I('v_add_u32 v%d, s46, v%d' % (V_EW, V_EW))
    I('v_lshrrev_b32 v11, 3, v8')
    I('s_lshl_b32 s46, s%d, 3' % S_W)
    I('v_add_u32 v11, s46, v11')
    I('v_mul_u32_u24 v%d, s47, v10' % V_ER)
    I('v_lshl_add_u32 v%d, v11, 4, v%d' % (V_ER, V_ER))
    I('v_add_u32 v%d, %d, v%d' % (V_ER, EXB, V_ER))
    I('v_mul_u32_u24 v%d, s42, v11' % V_OUT)
    I('v_lshl_add_u32 v%d, v10, 3, v%d' % (V_OUT, V_OUT))
    I('s_lshl_b32 s46, s%d, 10' % S_W)
    I('s_add_u32 s46, s46, %d' % STB2)
    I('v_add_u32 v%d, s46, v7' % V_SA)
    I('v_add_u32 v13, s46, v%d' % V_L16)
    I('s_lshl_b32 s46, s%d, 3' % S_W)
    I('v_subrev_u32 v14, s46, v8')
    I('v_and_b32 v15, 1, v8')
    I('v_lshlrev_b32 v15, 4, v15')
    I('v_mov_b32 v16, 0x3f80')
    I('v_lshlrev_b32 v15, v15, v16')
    I('v_lshrrev_b32 v14, 1, v14')
    for d in range(4):
        I('v_cmp_eq_u32 vcc, %d, v14' % d)
        I('v_cndmask_b32 v16, 0, v15, vcc')
        I('v_accvgpr_write_b32 a%d, v16' % (A_ID + d))
    I('v_and_b32 v14, 8, v8')
    I('v_lshlrev_b32 v14, 1, v14')
    I('v_xor_b32 v14, 16, v14')
    I('v_cmp_gt_u32 s[66:67], 48, v8')
    I('v_mov_b32 v15, 0x%x' % BIG)
    I('v_cndmask_b32 v15, v15, v%d, s[66:67]' % V_L16)
    for i in range(4):
        I('v_lshlrev_b32 v%d, v14, v%d' % (i, i))
        I('v_and_b32 v%d, 0xffff0000, v%d' % (i, i))
    I('s_mul_i32 s46, s%d, 768' % S_W)
    I('s_add_u32 s46, s46, %d' % WS_SUM)
    I('s_mov_b32 s48, 0x%x' % f2u(1.0 / (ALPHA * ALPHA)))
    I('s_lshl_b32 s49, s%d, 2' % S_W)
    I('v_mov_b32 v14, s49')
    I('v_mov_b32 v12, 0x%x' % f2u(1e-6))
    I('s_barrier')
    stamp(a, cfg, 'sync')
    SB = 4
    regs = [16, 20, 24, 28, 32, 36, 4, 8]
    for r in range(cfg.R):
        if r and r % 2 == 0: I('s_add_u32 s46, s46, 6144')
        I('buffer_load_dwordx4 %s, v15, %s, s46 offen offset:%d sc1' % (vr(regs[r], 4), ws, (r % 2) * 3072), tag='sum')
    def padd(d, s_):
        for k in (0, 2): I('v_pk_add_f32 %s, %s, %s' % (vr(d + k, 2), vr(d + k, 2), vr(s_ + k, 2)))
    a.wait_vm('sum')
    padd(16, 20); padd(24, 28); padd(32, 36); padd(4, 8); padd(16, 24); padd(32, 4); padd(16, 32)
    for i in range(4): I('v_fma_f32 v%d, v%d, s48, v12' % (16 + i, 16 + i))
    for i in range(4): I('v_sqrt_f32 v%d, v%d' % (16 + i, 16 + i))
    I('v_add_f32 v20, v16, v17')
    I('v_add_f32 v21, v18, v19')
    I('v_add_f32 v20, v20, v21')
    I('v_cndmask_b32 v20, 0, v20, s[66:67]')
    for i in range(4): I('v_mul_f32 v%d, v%d, v%d' % (i, i, 16 + i)) if i < 2 else None
    I('v_add_f32_dpp v20, v20, v20 quad_perm:[1,0,3,2] row_mask:0xf bank_mask:0xf')
    for i in range(2, 4): I('v_mul_f32 v%d, v%d, v%d' % (i, i, 16 + i))
    I('v_add_f32_dpp v20, v20, v20 quad_perm:[2,3,0,1] row_mask:0xf bank_mask:0xf')
    I('v_add_f32_dpp v20, v20, v20 row_half_mirror row_mask:0xf bank_mask:0xf')
    I('v_add_f32_dpp v20, v20, v20 row_ror:8 row_mask:0xf bank_mask:0xf')
    I('v_mov_b32 v21, v20')
    I('v_permlane16_swap_b32 v20, v21')
    I('v_add_f32 v20, v20, v21')
    I('v_mov_b32 v21, v20')
    I('v_permlane32_swap_b32 v20, v21')
    I('v_add_f32 v20, v20, v21')
    I('ds_write_b32 v14, v20')
    a.wait_lg(n=0)
    I('s_barrier')
    I('v_mov_b32 v14, 0')
    I('ds_read_b128 v[20:23], v14')
    I('v_add_f32 v20, v20, v21')
    I('v_add_f32 v22, v22, v23')
    I('v_add_f32 v20, v20, v22')
    I('v_fma_f32 v20, v20, 0x%x, v12' % f2u(1.0 / 768)) if False else None
    I('v_mov_b32 v21, 0x%x' % f2u(1.0 / 768))
    I('v_fma_f32 v20, v20, v21, v12')
    I('v_rcp_f32 v20, v20')
    I('v_mov_b32 v21, 0x%x' % f2u(1.0 / ALPHA))
    I('v_mul_f32 v20, v20, v21')
    for i in range(4): I('v_fma_f32 v%d, v%d, v20, v21' % (i, i))
    I('ds_write_b128 v13, v[0:3]', tag='sw')
    a.wait_lg(n=0)
    stamp(a, cfg, 's')

    a.sect = 'p2'
    abl = set(getattr(cfg, 'abl', '').split('+')) - {''}
    I0 = I
    def I(text, tag=None):
        if 'st' in abl and tag == 'st': return
        if 'x' in abl and tag and tag.startswith('x') and tag[1:].isdigit(): return
        if 'raw' in abl and tag == 'raw': return
        if 'bar' in abl and text == 's_barrier': return
        if 'exw' in abl and tag == 'exw': return
        if 'exr' in abl and tag == 'exr': return
        if 'gl' in abl and tag == 'gl': return
        if 's' in abl and tag == 's': return
        if 'valu' in abl and text.startswith(('v_mul', 'v_add', 'v_cvt')): return
        if 'bias' in abl and tag and tag.startswith('bias'): return
        I0(text, tag)
    F = lambda cb: FA if cb % 2 == 0 else FB
    scnt = [0]
    def sread(ks, hr):
        slot = scnt[0] % 2; scnt[0] += 1
        I('ds_read_b128 %s, v%d offset:%d' % (vr(V_S + 4 * slot, 4), V_SA, ks * 64 + hr * 32), tag='s')
        return V_S + 4 * slot
    def prep(raw, sreg, dst, rev=False):
        for i in range(4): I('v_mul_f32 v%d, v%d, v%d' % (raw + i, raw + i, sreg + i))
        for d in range(2): I('v_cvt_pk_bf16_f32 v%d, v%d, v%d' % (dst + d, raw + 2 * d, raw + 2 * d + 1))
    def greg(ks, t):
        eb, half = divmod(ks, 2); k, r = gdest(eb, t)
        if k == 'l': return ar(A_GL + 4 * half, 4)
        return (vr if k == 'v' else ar)(r + 4 * half, 4)
    def gread(idx, f):
        I('ds_read_b128 %s, v%d offset:%d' % (ar(A_GL + 4 * f, 4), V_GL, idx * 2048 + f * 1024), tag='gl')
    def exw(j, g):
        I('ds_write_b128 v%d, %s offset:%d' % (V_EW, ar(A_ACC[j % 2] + 4 * g, 4), (j % 2) * 18432 + g * 1152), tag='exw')
    def exr(j, sw):
        I('ds_read_b128 %s, v%d offset:%d' % (vr(V_TMP + 4 * sw, 4), V_ER, (j % 2) * 18432 + sw * 4608), tag='exr')
    def fin(j):
        cb, t = divmod(j, 7); T = V_TMP
        Fs = []
        for (d, s_) in ((0, 4), (8, 12), (0, 8)):
            for i in range(4): Fs.append(lambda d=d, s_=s_, i=i: I('v_add_f32 v%d, v%d, v%d' % (T + d + i, T + d + i, T + s_ + i)))
        Fs.append(lambda: I('v_cvt_pk_bf16_f32 v%d, v%d, v%d' % (T, T, T + 1)))
        Fs.append(lambda: I('v_cvt_pk_bf16_f32 v%d, v%d, v%d' % (T + 1, T + 2, T + 3)))
        Fs.append(lambda: I('buffer_store_dwordx2 %s, v%d, %s, s%d offen offset:%d%s' % (vr(T, 2), V_OUT, srd(SRD_OUT), S_ROW + t, cb * 64, cfg.out_flags), tag='st'))
        return Fs
    units = {}
    for cb in range(1, 6): units[cb] = [(ks, hr) for ks in KORD for hr in range(2)]
    allu = [(cb, ks, hr) for cb in range(1, 6) for (ks, hr) in units[cb]]
    def ublock(i):
        cb, k = divmod(i, 24)
        if cb == 0: return 1 + k // 4
        return cb * 7 + (k * 7) // 24
    sched = {}
    for i in range(len(allu)): sched.setdefault(ublock(i), []).append(i)
    ld_next = [0]
    def rawissue(upto):
        while ld_next[0] < min(upto, len(allu)):
            i = ld_next[0]; cb, ks, hr = allu[i]
            if hr == 0: I('s_add_u32 s41, s%d, %d' % (S_W2, cb * 24576 + ks * 2048))
            I('buffer_load_dwordx4 %s, v%d, %s, s41 offen offset:%d sc1' % (vr(V_RAW + 4 * (i % 6), 4), V_L16, ws, hr * 1024), tag='raw')
            ld_next[0] += 1
    for j in range(42):
        cb, t = divmod(j, 7)
        a.comment('block %d' % j); stamp(a, cfg, 'B%d' % j)
        acc = ar(A_ACC[j % 2], 16)
        order = list(KORD)
        if t == 0: order = [11, 6, 7, 8, 9, 2, 3, 10, 4, 5, 0, 1]
        RES = 6 if t else 8
        mf = [('k', ks) for ks in order]; mf.insert(RES, ('x', 0))
        ds = {k: [] for k in range(13)}; post = {k: [] for k in range(13)}
        if t == 0:
            ds[0].append(lambda: gread(7, 0)); ds[1].append(lambda: gread(7, 1))
            ds[6].append(lambda: gread(0, 0)); ds[7].append(lambda: gread(0, 1))
        else:
            ds[0].append(lambda: gread(t, 0)); ds[1].append(lambda: gread(t, 1))
        if j >= 2:
            fl = fin(j - 2)
            post[0] += fl[0:4]; post[1] += fl[4:8]; post[2] += fl[8:]
        if j >= 1:
            for g in range(4): ds[3 + g].append(lambda g=g: exw(j - 1, g))
            def bar():
                a.wait_lg('exw'); I('s_barrier')
            post[8].append(bar)
            for sw in range(4): ds[9 + sw].append(lambda sw=sw: exr(j - 1, sw))
        post[RES].append(lambda: xload(j + 2))
        if t == 3 and cb < 5:
            for g in range(4): post[3 + g].append(lambda g=g: bias_load(cb + 1, g))
        if j == 0:
            pend = []
            seqk = [ks for (k, ks) in mf if k == 'k']
            sr_ = {}
            def both(ks):
                sr_[(ks, 0)] = sread(ks, 0); sr_[(ks, 1)] = sread(ks, 1)
            both(seqk[0])
            pos = 0
            for (k, ks) in mf:
                if k == 'k':
                    hrs = (1, 0) if ks == 11 else (0, 1)
                    if ks == 11:
                        for hr in (0, 1):
                            for i in range(4): I('v_mul_f32 v%d, v%d, v%d' % (raw0_reg(ks, hr) + i, raw0_reg(ks, hr) + i, sr_[(ks, hr)] + i))
                        nx = seqk[seqk.index(ks) + 1]; both(nx)
                        for d in (3, 2, 1, 0): I('v_cvt_pk_bf16_f32 v%d, v%d, v%d' % (FA + 44 + d, FA + 40 + 2 * d, FA + 41 + 2 * d))
                    else:
                        for hr in (0, 1):
                            for i in range(4): I('v_mul_f32 v%d, v%d, v%d' % (raw0_reg(ks, hr) + i, raw0_reg(ks, hr) + i, sr_[(ks, hr)] + i))
                        if seqk.index(ks) + 1 < 12: both(seqk[seqk.index(ks) + 1])
                        for hr in (0, 1):
                            for d in range(2): I('v_cvt_pk_bf16_f32 v%d, v%d, v%d' % (FA + 4 * ks + 2 * hr + d, raw0_reg(ks, hr) + 2 * d, raw0_reg(ks, hr) + 2 * d + 1))
                    I('v_mfma_f32_32x32x16_bf16 %s, %s, %s, %s' % (acc, vr(FA + 4 * ks, 4), greg(ks, t), ar(A_BIAS[0], 16) if pos == 0 else acc))
                    if ks == 8: pass
                else:
                    I('v_mfma_f32_32x32x16_bf16 %s, %s, %s, %s' % (acc, ar(A_ID, 4), ar(A_X + 4 * (j % 3), 4), acc))
                for f in ds[pos] + post[pos]: f()
                if pos == 4: rawissue(3)
                if pos == 8: rawissue(6)
                pos += 1
            continue
        us = sched.get(j, [])
        if len(us) == 4: uslots, sslots, sregs = [7, 8, 10, 11], [2, 2, 7, 8], [V_S, V_TMP + 12, V_S + 4, V_S]
        else: uslots, sslots, sregs = [7, 10, 11], [2, 7, 8], [V_S, V_S + 4, V_S]
        for i, u in enumerate(us):
            cbn, ks, hr = allu[u]
            ds[sslots[i]].append(lambda ks=ks, hr=hr, r=sregs[i]: I('ds_read_b128 %s, v%d offset:%d' % (vr(r, 4), V_SA, ks * 64 + hr * 32), tag='s'))
            def pr(u=u, cbn=cbn, ks=ks, hr=hr, r=sregs[i]):
                prep(V_RAW + 4 * (u % 6), r, F(cbn) + 4 * ks + 2 * hr)
                rawissue(u + 7)
            post[uslots[i]].insert(0, pr)
        for pos, (k, ks) in enumerate(mf):
            if k == 'k':
                I('v_mfma_f32_32x32x16_bf16 %s, %s, %s, %s' % (acc, vr(F(cb) + 4 * ks, 4), greg(ks, t), ar(A_BIAS[cb % 2], 16) if pos == 0 else acc))
            else:
                I('v_mfma_f32_32x32x16_bf16 %s, %s, %s, %s' % (acc, ar(A_ID, 4), ar(A_X + 4 * (j % 3), 4), acc))
            for f in ds[pos] + post[pos]: f()
    for f in fin(40): f()
    for g in range(4): exw(41, g)
    a.wait_lg('exw'); I('s_barrier')
    for sw in range(4): exr(41, sw)
    for f in fin(41): f()
    stamp(a, cfg, 'end')
    if cfg.stamps: gen_stamps_out(a, cfg, len(cfg.stamps))
    I('s_endpgm')
    a.forget()
    a.label('L_slow1')
    I('s_mov_b32 s5, %d' % SPIN_MAX)
    if cfg.marks:
        I('s_mov_b64 exec, 1')
        I('v_mov_b32 v%d, 1' % V_FLAG)
        I('buffer_atomic_add v%d, off, %s, 0 offset:4 sc1' % (V_FLAG, srd(SRD_DBG)))
        I('s_waitcnt vmcnt(0)'); a.vmq = []
        I('s_mov_b64 exec, -1')
    a.label('L_slow1b')
    I('s_sleep 2')
    I('buffer_load_dword v%d, off, %s, 0 sc1' % (V_FLAG, srd(SRD_DBG)))
    I('s_waitcnt vmcnt(0)'); a.vmq = []
    I('v_readfirstlane_b32 s4, v%d' % V_FLAG)
    I('s_sub_u32 s5, s5, 1')
    I('s_cbranch_scc1 %s' % ('L_slow1c' if cfg.marks else 'L_back1'))
    I('s_cmp_lg_u32 s4, %d' % NH)
    I('s_cbranch_scc1 L_slow1b')
    I('s_branch L_back1')
    if cfg.marks:
        a.label('L_slow1c')
        I('s_mov_b64 exec, 1')
        I('v_mov_b32 v%d, 1' % V_FLAG)
        I('buffer_atomic_add v%d, off, %s, 0 offset:8 sc1' % (V_FLAG, srd(SRD_DBG)))
        I('s_waitcnt vmcnt(0)'); a.vmq = []
        I('s_mov_b64 exec, -1')
        I('s_branch L_back1')
```

```python
import sys, math, struct
from asmlib import *

NAME = 'standalone__modern_conv_block_convnext_v2__vision'
def f2u(x): return struct.unpack('<I', struct.pack('<f', x))[0]

class Cfg:
    stop = None
    stamps = False
    R = 8
    out_flags = ' sc1'
    prefetch_code = True
    w2warm = True
    marks = False
    rt = False
    ywaits = {0: 6, 7: 9, 10: 11}

ALPHA = 0.1029432397 ** (1.0 / 3.0)
APRIME = 2.302208198 / ALPHA
NMAIN = 224
NH = 29
XBYTES = 224 * 224 * 384
WS_W1 = 0
WS_W2 = 0x48000
WS_BIAS = 0xD8000
WS_SUM = 0xD9000
WS_DUMP = 0x200000
WS_STAMP = 0x100000
WS_SIZE = 268435456
HB = 2048
ROWP = 13056
GB = HB + 7 * ROWP
EXB = 2048
STB = 40960
BTB = 44032
LDS_BYTES = 163840
BIG = 0x80000000

S_W = 3
SRD_X, SRD_DW, SRD_W1, SRD_WS, SRD_OUT, SRD_GAM, SRD_DBG = 8, 12, 16, 20, 24, 28, 32
S_R0, S_C0, S_XB = 36, 37, 38
S_T0 = 40
S_ONE, S_AP = 60, 62
S_PLO, S_PHI = 64, 65
S_EX = 66
S_ROW, S_AT, S_W1F, S_W2 = 70, 77, 78, 79
S_STAMP = 80

V_X, V_Z, V_SQ = 0, 48, 80
V_LANE, V_YA, V_YB, V_AT, V_L16, V_GL = 96, 97, 98, 99, 100, 101
V_W10, V_W11 = 160, 208
V_SPARE = 159
A_RING = 0
A_W1A, A_W1B = 32, 80
A_G = 128

def srd(b): return 's[%d:%d]' % (b, b + 3)

def stamp(a, cfg, name):
    if cfg.stamps and name in cfg.stamps:
        idx = cfg.stamps.index(name)
        a.I('%s s[%d:%d]' % ('s_memrealtime' if cfg.rt else 's_memtime', S_STAMP + 2 * idx, S_STAMP + 2 * idx + 1))

def gen_entry(a, cfg):
    I = a.I
    a.sect = 'entry'
    I('s_load_dwordx2 s[8:9], s[0:1], 0')
    I('s_load_dwordx2 s[12:13], s[0:1], 8')
    I('s_load_dwordx2 s[16:17], s[0:1], 16')
    I('s_load_dwordx2 s[20:21], s[0:1], 64')
    I('s_load_dwordx2 s[32:33], s[0:1], 56')
    stamp(a, cfg, 'start')
    if cfg.stamps: I('s_memrealtime s[98:99]')
    I('v_lshrrev_b32 v1, 6, v0')
    I('v_and_b32 v%d, 63, v0' % V_LANE)
    I('v_readfirstlane_b32 s%d, v1' % S_W)
    I('s_mov_b32 s18, %d' % (192 * 768 * 2))
    I('s_mov_b32 s19, 0x20000')
    I('s_mov_b32 s22, %d' % WS_SIZE)
    I('s_mov_b32 s23, 0x20000')
    I('s_mov_b32 s34, 256')
    I('s_mov_b32 s35, 0x20000')
    I('s_cmp_ge_u32 s2, %d' % NMAIN)
    I('s_cbranch_scc1 L_helper')

def gen_prologue(a, cfg):
    I = a.I
    a.sect = 'pro'
    L = V_LANE
    I('s_mov_b32 s10, %d' % XBYTES)
    I('s_mov_b32 s11, 0x20000')
    I('s_mov_b32 s14, 3456')
    I('s_mov_b32 s15, 0x20000')
    I('v_and_b32 v20, 15, v%d' % L)
    I('v_bfe_u32 v21, v%d, 4, 1' % L)
    I('v_lshlrev_b32 v22, 1, v20')
    I('v_mad_u32_u24 v23, v21, 384, v22')
    a.ins.pop()
    I('s_movk_i32 s40, 384')
    I('s_movk_i32 s41, 1152')
    I('v_mad_u32_u24 v23, v21, s40, v22')
    I('v_mad_u32_u24 v22, v21, s41, v22')
    I('s_and_b32 s42, s2, 7')
    I('s_lshr_b32 s43, s2, 3')
    I('s_mul_i32 s44, s43, 37')
    I('s_lshr_b32 s44, s44, 8')
    I('s_mul_i32 s45, s44, 7')
    I('s_sub_u32 s45, s43, s45')
    I('s_lshl_b32 s42, s42, 2')
    I('s_add_u32 s42, s42, s44')
    I('s_mul_i32 s%d, s42, 7' % S_R0)
    I('s_lshl_b32 s%d, s45, 5' % S_C0)
    I('s_mul_i32 s46, s%d, 96' % S_W)
    for pi in range(5):
        for cg in range(3):
            if pi < 3: va, off = 22, pi * 384 + cg * 32
            else: va, off = 23, (6 if pi == 3 else 8) * 384 + cg * 32
            I('buffer_load_ushort v%d, v%d, %s, s46 offen offset:%d' % (pi * 3 + cg, va, srd(SRD_DW), off), tag='dw')
    I('s_lshl_b32 s47, s%d, 3' % S_W)
    I('s_add_u32 s48, s47, 1')
    I('s_movk_i32 s49, 171')
    for j in range(3):
        I('v_add_u32 v24, %d, v%d' % (64 * j, L))
        I('v_mul_u32_u24 v25, s49, v24')
        I('v_lshrrev_b32 v25, 12, v25')
        I('v_mul_u32_u24 v26, 24, v25')
        I('v_sub_u32 v26, v24, v26')
        I('v_add_u32 v27, s48, v25')
        I('v_bfe_u32 v27, v27, 1, 3')
        I('v_xor_b32 v26, v26, v27')
        I('v_add_u32 v25, s47, v25')
        I('v_mul_u32_u24 v25, s40, v25')
        I('v_lshl_add_u32 v25, v26, 4, v25')
        I('v_subrev_u32 v%d, %d, v25' % (63 + j, 1024 * j))
    I('s_mul_i32 s50, s%d, 224' % S_R0)
    I('s_add_u32 s50, s50, s%d' % S_C0)
    I('s_sub_u32 s50, s50, 224')
    I('s_mul_i32 s%d, s50, 384' % S_XB)
    I('s_mul_i32 s51, s%d, 3072' % S_W)
    I('s_add_u32 s51, s51, %d' % (HB + 384))
    def row(hr):
        if hr == 0:
            I('s_cmp_eq_u32 s%d, 0' % S_R0)
            I('s_cselect_b32 s52, 0x%x, s%d' % (0x7fff0000, S_XB))
            I('s_mov_b32 m0, s51')
        else:
            I('s_add_u32 s52, s%d, %d' % (S_XB, hr * 224 * 384))
            I('s_add_u32 m0, s51, %d' % (hr * ROWP))
        for j in range(3):
            I('buffer_load_dwordx4 v%d, %s, s52 offen offset:%d lds' % (63 + j, srd(SRD_X), 1024 * j), tag='row%d' % hr)
    stamp(a, cfg, 'i0')
    for hr in range(3): row(hr)
    stamp(a, cfg, 'i1')
    I('v_cmp_le_u32 vcc, 24, v%d' % L)
    I('v_cndmask_b32 v24, 0, 1, vcc')
    I('v_mul_u32_u24 v25, 24, v24')
    I('v_sub_u32 v25, v%d, v25' % L)
    I('v_lshlrev_b32 v25, 4, v25')
    I('s_mov_b32 exec_hi, 0xffff')
    for i in range(3):
        I('s_add_u32 s53, s%d, %d' % (S_W, 4 * i))
        I('s_mul_i32 s54, s53, %d' % (224 * 384))
        I('s_add_u32 s54, s54, s%d' % S_XB)
        I('s_add_u32 s54, s54, %d' % ((-224 + 32) * 384 & 0xffffffff))
        I('s_add_u32 s55, s54, %d' % (191 * 384))
        I('s_add_u32 s56, s%d, s53' % S_R0)
        I('s_sub_u32 s57, s56, 2')
        I('s_cmp_lt_u32 s57, 224'); I('s_cselect_b32 s54, s54, 0x%x' % BIG)
        I('s_sub_u32 s57, s53, 1')
        I('s_cmp_lt_u32 s57, 9'); I('s_cselect_b32 s54, s54, 0x%x' % BIG)
        I('s_cmp_lt_u32 s%d, 192' % S_C0); I('s_cselect_b32 s54, s54, 0x%x' % BIG)
        I('s_sub_u32 s57, s56, 1')
        I('s_cmp_lt_u32 s57, 224'); I('s_cselect_b32 s55, s55, 0x%x' % BIG)
        I('s_cmp_lt_u32 s53, 9'); I('s_cselect_b32 s55, s55, 0x%x' % BIG)
        I('s_cmp_gt_u32 s%d, 0' % S_C0); I('s_cselect_b32 s55, s55, 0x%x' % BIG)
        I('s_sub_u32 s55, s55, s54')
        I('v_mul_lo_u32 v26, v24, s55')
        I('v_add3_u32 v26, v26, s54, v25')
        I('s_mul_i32 s53, s53, %d' % ROWP)
        I('s_add_u32 m0, s53, %d' % (HB - 384))
        I('buffer_load_dwordx4 v26, %s, 0 offen lds' % srd(SRD_X), tag='edge')
    I('s_mov_b32 exec_hi, -1')
    for hr in range(3, 6): row(hr)
    stamp(a, cfg, 'i2')
    I('v_lshrrev_b32 v24, 5, v%d' % L)
    I('v_and_b32 v25, 31, v%d' % L)
    I('v_lshlrev_b32 v25, 2, v25')
    I('s_movk_i32 s53, %d' % (8 * 1536))
    I('v_mad_u32_u24 v66, v24, s53, v25')
    I('v_add_u32 v67, %d, v66' % (3 * 1536))
    I('v_add_u32 v68, %d, v66' % (6 * 1536))
    I('s_mul_i32 s58, s%d, 384' % S_W)
    w1q = []
    def mk(ks, i):
        def f():
            if i == 0 and ks > 0: I('s_add_u32 s58, s58, 24576')
            k = ks * 4 + i // 2
            if i % 2 == 0: dst = V_W10 + k + 1 if k < 47 else V_SPARE
            else: dst = V_W11 + k
            I('buffer_load_dword v%d, v%d, %s, s58 offen offset:%d' % (dst, 66 + i // 3, srd(SRD_W1), (i % 3) * 1536), tag='w1')
        return f
    for ks in range(12):
        for i in range(8): w1q.append(mk(ks, i))
    def w1issue(n):
        for _ in range(n):
            if w1q: w1q.pop(0)()
    permq = list(range(48))
    def perm1():
        k = permq.pop(0)
        A = V_W10 + k + 1 if k < 47 else V_SPARE
        B = V_W11 + k
        I('v_perm_b32 v%d, v%d, v%d, s%d' % (V_W10 + k, B, A, S_PLO))
        I('v_perm_b32 v%d, v%d, v%d, s%d' % (B, B, A, S_PHI))
    w1issue(24)
    stamp(a, cfg, 'i3')
    I('s_mov_b32 s%d, 0x05040100' % S_PLO)
    I('s_mov_b32 s%d, 0x07060302' % S_PHI)
    I('s_load_dwordx2 s[24:25], s[0:1], 48')
    I('s_load_dwordx2 s[28:29], s[0:1], 32')
    I('s_mov_b32 s26, %d' % XBYTES); I('s_mov_b32 s27, 0x20000')
    I('s_mov_b32 s30, 1536'); I('s_mov_b32 s31, 0x20000')
    I('s_mov_b32 s%d, 1.0' % S_ONE); I('s_mov_b32 s%d, 1.0' % (S_ONE + 1))
    I('s_mov_b32 s%d, 0x%x' % (S_AP, f2u(APRIME))); I('s_mov_b32 s%d, 0x%x' % (S_AP + 1, f2u(APRIME)))
    I('v_lshrrev_b32 v24, 5, v%d' % L)
    I('s_mul_i32 s53, s%d, 6' % S_W)
    I('v_add_u32 v24, s53, v24')
    I('s_movk_i32 s54, %d' % ROWP)
    I('v_mul_u32_u24 v28, s54, v21')
    for pi in range(5):
        if pi < 3: I('v_add_u32 v25, %d, v20' % pi)
        elif pi == 3: I('v_add_u32 v25, v20, v21')
        else: I('v_add_u32 v25, 2, v20')
        I('v_bfe_u32 v26, v25, 1, 3')
        I('v_mul_u32_u24 v25, s40, v25')
        if pi < 3: I('v_add3_u32 v25, v25, v28, %s' % 's59' if False else 'v_add_u32 v25, v25, v28')
        I('v_add_u32 v25, %d, v25' % (HB + (2 * ROWP if pi >= 3 else 0)))
        for cg in range(3):
            I('v_add_u32 v27, %d, v24' % (2 * cg))
            I('v_xor_b32 v27, v27, v26')
            I('v_lshl_add_u32 v%d, v27, 4, v25' % (48 + pi * 3 + cg))
    I('v_lshrrev_b32 v25, 5, v%d' % L)
    I('v_lshlrev_b32 v25, 9, v25')
    I('v_lshl_add_u32 v25, v20, 4, v25')
    I('v_lshl_add_u32 v25, v21, 3, v25')
    I('s_mul_i32 s53, s%d, 3072' % S_W)
    I('s_add_u32 s53, s53, %d' % HB)
    I('v_add_u32 v69, s53, v25')
    I('v_lshlrev_b32 v%d, 4, v%d' % (V_L16, L))
    I('s_lshl_b32 s53, s%d, 2' % S_W)
    I('v_add_u32 v70, s53, v%d' % V_L16)
    I('v_add_u32 v%d, %d, v%d' % (V_YA, HB, V_L16))
    I('v_add_u32 v%d, %d, v%d' % (V_YB, HB + 4 * ROWP, V_L16))
    I('s_lshl_b32 s53, s%d, 14' % S_W)
    I('s_add_u32 s53, s53, %d' % GB)
    I('v_add_u32 v%d, s53, v%d' % (V_GL, V_L16))
    I('v_and_b32 v25, 1, v20')
    I('v_lshlrev_b32 v25, 4, v25')
    I('v_mov_b32 v26, 0xffff')
    I('v_lshlrev_b32 v25, v25, v26')
    I('v_lshrrev_b32 v26, 5, v%d' % L)
    I('v_lshlrev_b32 v26, 2, v26')
    I('v_lshrrev_b32 v27, 1, v20')
    I('v_sub_u32 v26, v27, v26')
    for r in range(4):
        I('v_cmp_eq_u32 vcc, %d, v26' % r)
        I('v_cndmask_b32 v%d, 0, v25, vcc' % (16 + r))
    A_CA = 32
    stamp(a, cfg, 'i4')
    for f in range(15):
        I('v_lshl_or_b32 v%d, v%d, 16, v%d' % (f, f, f))
        for r in range(4):
            I('v_and_b32 v%d, v%d, v%d' % (28 + r, f, 16 + r))
        for r in range(4):
            I('v_accvgpr_write_b32 a%d, v%d' % (A_CA + 4 * f + r, 28 + r))
    stamp(a, cfg, 'i5')
    for hr in range(6, 9): row(hr)
    w1issue(9)
    stamp(a, cfg, 'pre')

    ACC = [0, 24]
    ring = [0]
    NR = 8
    VB = lambda pi, cg: 48 + pi * 3 + cg
    def bread(t, pxg, cg, pi):
        slot = ring[0] % NR; ring[0] += 1
        tt = t if t < 5 else t - 5
        I('ds_read_b128 a[%d:%d], v%d offset:%d' % (A_RING + 4 * slot, A_RING + 4 * slot + 3, VB(pi, cg), tt * ROWP + pxg * 6144), tag='cb')
        return slot
    seq = [(pxg, cg, pi) for pxg in range(2) for cg in range(3) for pi in range(5)]
    INV = 1.0 / 192
    def ln_finish(t):
        acc = ACC[t % 2]; buf = (t % 2) * 1024
        F = []
        F.append(lambda: I('ds_read_b128 v[76:79], v%d offset:%d' % (V_L16, buf)))
        F.append(lambda: I('v_add_f32 v76, v76, v77'))
        F.append(lambda: I('v_add_f32 v78, v78, v79'))
        F.append(lambda: I('v_add_f32 v76, v76, v78'))
        F.append(lambda: I('v_mov_b32 v77, v76'))
        F.append(lambda: I('v_permlane16_swap_b32 v76, v77'))
        F.append(lambda: I('v_mul_f32 v76, 0x%x, v76' % f2u(INV)))
        F.append(lambda: I('v_mul_f32 v78, v76, v76'))
        F.append(lambda: I('v_fma_f32 v77, v77, s59, -v78'))
        F.append(lambda: I('v_max_f32 v77, 0, v77'))
        F.append(lambda: I('v_add_f32 v77, 0x%x, v77' % f2u(1e-5)))
        F.append(lambda: I('v_rsq_f32 v77, v77'))
        F.append(lambda: I('v_mul_f32 v80, 0x%x, v77' % f2u(ALPHA)))
        F.append(lambda: I('v_mul_f32 v82, v76, v80'))
        F.append(lambda: I('v_mov_b32 v81, v80'))
        F.append(lambda: I('v_mov_b32 v83, v82'))
        F.append(lambda: I('v_permlane32_swap_b32 v80, v81'))
        F.append(lambda: I('v_permlane32_swap_b32 v82, v83'))
        for pxg in range(2):
            for cg in range(3):
                b = acc + (pxg * 3 + cg) * 4
                for i in range(4):
                    F.append(lambda b=b, i=i, pxg=pxg: I('v_fma_f32 v%d, v%d, v%d, -v%d' % (b + i, b + i, 80 + pxg, 82 + pxg)))
                F.append(lambda b=b: I('v_cvt_pk_bf16_f32 v%d, v%d, v%d' % (b, b, b + 1)))
                F.append(lambda b=b: I('v_cvt_pk_bf16_f32 v%d, v%d, v%d' % (b + 1, b + 2, b + 3)))
                tt = t if t < 5 else t - 5
                F.append(lambda b=b, tt=tt, cg=cg, pxg=pxg: I('ds_write_b64 v69, v[%d:%d] offset:%d' % (b, b + 1, tt * ROWP + cg * 1024 + pxg * 256), tag='yw'))
        return F
    def psum(t, pxg, cg):
        acc = ACC[t % 2]; b = acc + (pxg * 3 + cg) * 4
        sa, sb = 72 + 2 * pxg, 73 + 2 * pxg
        F = []
        for i in range(4):
            if cg == 0 and i == 0:
                F.append(lambda: I('v_add_f32 v%d, v%d, v%d' % (sa, b, b + 1)))
                F.append(lambda: I('v_mul_f32 v%d, v%d, v%d' % (sb, b, b)))
            else:
                if not (cg == 0 and i == 1):
                    F.append(lambda i=i: I('v_add_f32 v%d, v%d, v%d' % (sa, sa, b + i)))
                F.append(lambda i=i: I('v_fmac_f32 v%d, v%d, v%d' % (sb, b + i, b + i)))
        return F
    def stats_out(t):
        buf = (t % 2) * 1024
        I('v_permlane32_swap_b32 v72, v74')
        I('v_permlane32_swap_b32 v73, v75')
        I('v_add_f32 v72, v72, v74')
        I('v_add_f32 v73, v73, v75')
        I('v_permlane16_swap_b32 v72, v73')
        I('v_add_f32 v72, v72, v73')
        I('ds_write_b32 v70, v72 offset:%d' % buf, tag='st')
    I('s_mov_b32 s59, 0x%x' % f2u(INV))
    w1plan = {0: 12, 1: 3, 2: 3, 3: 27, 4: 3, 5: 3, 6: 99}
    permplan = {3: 12, 6: 12}
    PRE = 3
    for t in range(7):
        a.comment('conv row %d' % t)
        stamp(a, cfg, 'c%d' % t)
        if t == 5:
            for r in range(48, 63): I('v_add_u32 v%d, %d, v%d' % (r, 5 * ROWP, r))
        slots = []
        if t > 0:
            for k in range(PRE): slots.append(bread(t, *seq[k]))
        a.wait_both(vmtags=['row%d' % (t + 2), 'edge'] if t == 0 else ['row%d' % (t + 2)], lgtags=['st'])
        I('s_barrier')
        stamp(a, cfg, 'b%d' % t)
        fill = ln_finish(t - 1) if t > 0 else []
        if t == 6: fill.insert(18, lambda: I('v_add_u32 v69, %d, v69' % (5 * ROWP)))
        for _ in range(w1plan.get(t, 0)):
            if w1q: fill.append(w1q.pop(0))
        for _ in range(permplan.get(t, 0)): fill.append(perm1)
        while len(slots) < 6: slots.append(bread(t, *seq[len(slots)]))
        nfill = len(fill)
        per = max(1, math.ceil((nfill + 30) / 28.0))
        for k, (pxg, cg, pi) in enumerate(seq):
            d = ACC[t % 2] + (pxg * 3 + cg) * 4
            s_ = slots[k]
            c = '0' if pi == 0 else 'v[%d:%d]' % (d, d + 3)
            I('v_mfma_f32_16x16x32_bf16 v[%d:%d], a[%d:%d], a[%d:%d], %s' % (d, d + 3, A_CA + 4 * (pi * 3 + cg), A_CA + 4 * (pi * 3 + cg) + 3, A_RING + 4 * s_, A_RING + 4 * s_ + 3, c))
            if len(slots) < 30: slots.append(bread(t, *seq[len(slots)]))
            if pi == 2 and k >= 5:
                pp, pc, _ = seq[k - 5]
                fill += psum(t, pp, pc)
            for _ in range(per):
                if fill: fill.pop(0)()
        while fill: fill.pop(0)()
        for f in psum(t, 1, 2): f()
        stats_out(t)
    a.wait_lg('st')
    I('s_barrier')
    for f in ln_finish(6): f()
    while permq: perm1()
    a.wait_lg(n=0)
    I('s_barrier')
    stamp(a, cfg, 'pro')

def gen_dump_y(a):
    I = a.I
    I('s_mul_i32 s40, s2, 86016')
    I('s_add_u32 s40, s40, %d' % WS_DUMP)
    I('s_mul_i32 s41, s%d, 3072' % S_W)
    I('s_add_u32 s40, s40, s41')
    I('s_add_u32 s41, s41, %d' % HB)
    I('v_add_u32 v1, s41, v%d' % V_L16)
    for t in range(7):
        for j in range(3):
            I('ds_read_b128 v[4:7], v1 offset:%d' % (j * 1024))
            I('buffer_store_dwordx4 v[4:7], v%d, %s, s40 offen offset:%d' % (V_L16, srd(SRD_WS), j * 1024))
            a.wait_vm(n=0)
        I('v_add_u32 v1, %d, v1' % ROWP)
        I('s_add_u32 s40, s40, 12288')
    I('s_mul_i32 s40, s%d, 24576' % S_W)
    I('s_add_u32 s40, s40, %d' % (WS_DUMP + 0x1400000))
    I('s_cmp_lg_u32 s2, 0')
    I('s_cbranch_scc1 L_end')
    for k in range(24):
        I('buffer_store_dwordx4 v[%d:%d], v%d, %s, s40 offen' % (V_W10 + 4 * k, V_W10 + 4 * k + 3, V_L16, srd(SRD_WS)))
        I('s_add_u32 s40, s40, 1024')

def gen_helper(a, cfg):
    I = a.I
    a.sect = 'helper'
    a.forget()
    a.label('L_helper')
    L = V_LANE
    I('s_cmp_ge_u32 s2, %d' % (NMAIN + NH))
    I('s_cbranch_scc1 L_end')
    I('s_load_dwordx2 s[24:25], s[0:1], 24')
    I('s_load_dwordx2 s[44:45], s[0:1], 40')
    I('s_mov_b32 s26, %d' % (768 * 192 * 2)); I('s_mov_b32 s27, 0x20000')
    I('s_sub_u32 s40, s2, %d' % NMAIN)
    I('v_lshlrev_b32 v%d, 4, v%d' % (V_L16, L))
    if cfg.prefetch_code:
        I('s_getpc_b64 s[46:47]')
        a.label('L_pc')
        I('s_sub_u32 s46, s46, L_pc-%s_kernel' % NAME)
        I('s_subb_u32 s47, s47, 0')
        I('s_lshl_b32 s48, s%d, 10' % S_W)
        I('v_add_u32 v2, s48, v%d' % V_L16)
        I('s_mov_b32 s48, (L_code_end-%s_kernel)/4096' % NAME)
        a.label('L_pf')
        I('global_load_dwordx4 v[252:255], v2, s[46:47]')
        a.vmq = []
        I('v_add_u32 v2, 4096, v2')
        I('s_sub_u32 s48, s48, 1')
        I('s_cmp_lg_u32 s48, 0')
        I('s_cbranch_scc1 L_pf')
    I('s_waitcnt lgkmcnt(0)'); a.forget()
    I('s_cmp_ge_u32 s40, 24')
    I('s_cbranch_scc1 L_hb')
    I('s_mul_i32 s41, s40, 43'); I('s_lshr_b32 s41, s41, 8')
    I('s_mul_i32 s42, s41, 6'); I('s_sub_u32 s42, s40, s42')
    I('s_mul_i32 s43, s41, 192')
    I('s_lshr_b32 s46, s42, 1'); I('s_lshl_b32 s46, s46, 6'); I('s_add_u32 s43, s43, s46')
    I('s_and_b32 s46, s42, 1'); I('s_add_u32 s43, s43, s46')
    I('v_lshrrev_b32 v10, 5, v%d' % L)
    I('v_and_b32 v11, 31, v%d' % L)
    I('s_movk_i32 s46, 3072')
    I('v_lshlrev_b32 v12, 1, v11')
    I('v_mad_u32_u24 v12, v10, s46, v12')
    I('s_lshl_b32 s46, s%d, 4' % S_W)
    I('s_add_u32 s46, s46, s43')
    I('s_mul_i32 s46, s46, 384')
    for cb in range(6):
        for i4 in range(4):
            I('buffer_load_ushort v%d, v12, %s, s46 offen offset:%d' % (16 + cb * 4 + i4, srd(24), i4 * 768 + cb * 64))
    I('s_movk_i32 s47, %d' % (8 * 1536))
    I('v_lshlrev_b32 v13, 2, v11')
    I('v_mad_u32_u24 v13, v10, s47, v13')
    I('s_mul_i32 s47, s%d, %d' % (S_W, 48 * 1536))
    I('s_lshl_b32 s48, s43, 1')
    I('s_add_u32 s47, s47, s48')
    for k in range(3):
        for i in range(8):
            I('buffer_load_ushort v%d, v13, %s, s47 offen' % (40 + k * 8 + i, srd(SRD_W1)))
            I('s_add_u32 s47, s47, %d' % (1536 if i < 7 else 9 * 1536))
    I('s_mul_i32 s46, s41, 147456')
    I('s_lshl_b32 s48, s42, 12'); I('s_add_u32 s46, s46, s48')
    I('s_lshl_b32 s48, s%d, 10' % S_W); I('s_add_u32 s46, s46, s48')
    I('s_add_u32 s46, s46, %d' % WS_W2)
    for cb in range(6):
        for i4 in range(4): I('v_lshlrev_b32 v%d, 16, v%d' % (16 + cb * 4 + i4, 16 + cb * 4 + i4))
        I('buffer_store_dwordx4 v[%d:%d], v%d, %s, s46 offen sc1' % (16 + cb * 4, 19 + cb * 4, V_L16, srd(SRD_WS)))
        I('s_add_u32 s46, s46, 24576')
    I('s_mul_i32 s46, s40, 12288')
    I('s_mul_i32 s48, s%d, 3072' % S_W); I('s_add_u32 s46, s46, s48')
    for k in range(3):
        for r in range(4):
            I('v_lshl_or_b32 v%d, v%d, 16, v%d' % (64 + k * 4 + r, 40 + k * 8 + 2 * r + 1, 40 + k * 8 + 2 * r))
        I('buffer_store_dwordx4 v[%d:%d], v%d, %s, s46 offen offset:%d sc1' % (64 + k * 4, 67 + k * 4, V_L16, srd(SRD_WS), WS_W1 + k * 1024))
    I('s_branch L_hdone')
    a.forget()
    a.label('L_hb')
    I('s_cmp_ge_u32 s40, 28')
    I('s_cbranch_scc1 L_hz')
    I('s_sub_u32 s41, s40, 24')
    I('s_mul_i32 s42, s41, 192'); I('s_mul_i32 s43, s%d, 48' % S_W); I('s_add_u32 s42, s42, s43')
    I('s_lshl_b32 s43, s42, 1')
    I('s_add_u32 s44, s44, s43'); I('s_addc_u32 s45, s45, 0')
    I('s_load_dwordx8 s[72:79], s[44:45], 0')
    I('s_load_dwordx8 s[80:87], s[44:45], 32')
    I('s_load_dwordx8 s[88:95], s[44:45], 64')
    I('s_mul_i32 s42, s42, 384')
    I('v_lshlrev_b32 v12, 3, v%d' % L)
    I('v_cmp_gt_u32 vcc, 48, v%d' % L)
    I('v_mov_b32 v13, 0x%x' % BIG)
    I('v_cndmask_b32 v12, v13, v12, vcc')
    for r in range(48):
        I('buffer_load_dwordx2 v[%d:%d], v12, %s, s42 offen offset:%d' % (104 + 2 * r, 105 + 2 * r, srd(24), (r % 8) * 384))
        if r % 8 == 7: I('s_add_u32 s42, s42, 3072')
    for i in range(4): I('v_mov_b32 v%d, 0' % (4 + i))
    for r in range(48):
        sreg = 72 + r // 2
        if r % 2 == 0: I('s_lshl_b32 s46, s%d, 16' % sreg)
        else: I('s_and_b32 s46, s%d, 0xffff0000' % sreg)
        for d in range(2):
            I('v_lshlrev_b32 v8, 16, v%d' % (104 + 2 * r + d))
            I('v_and_b32 v9, 0xffff0000, v%d' % (104 + 2 * r + d))
            I('v_fmac_f32 v%d, s46, v8' % (4 + 2 * d))
            I('v_fmac_f32 v%d, s46, v9' % (5 + 2 * d))
    I('s_lshl_b32 s46, s%d, 10' % S_W)
    I('v_add_u32 v10, s46, v%d' % V_L16)
    I('ds_write_b128 v10, v[4:7]')
    a.wait_lg(n=0)
    I('s_barrier')
    for k in range(4): I('ds_read_b128 v[%d:%d], v%d offset:%d' % (16 + 4 * k, 19 + 4 * k, V_L16, k * 1024))
    for k in range(1, 4):
        for i in range(4): I('v_add_f32 v%d, v%d, v%d' % (16 + i, 16 + i, 16 + 4 * k + i))
    I('v_cndmask_b32 v12, v13, v%d, vcc' % V_L16)
    I('s_mul_i32 s46, s41, 768')
    I('s_add_u32 s46, s46, %d' % WS_BIAS)
    I('s_cmp_lg_u32 s%d, 0' % S_W)
    I('s_cbranch_scc1 L_hdone')
    I('buffer_store_dwordx4 v[16:19], v12, %s, s46 offen sc1' % srd(SRD_WS))
    I('s_branch L_hdone')
    a.forget()
    a.label('L_hz')
    nz = cfg.R * 3072 + 4096
    assert nz % 4096 == 0
    for i in range(4): I('v_mov_b32 v%d, 0' % (4 + i))
    I('s_lshl_b32 s46, s%d, 10' % S_W)
    I('s_add_u32 s46, s46, %d' % WS_SUM)
    for k in range(nz // 4096):
        I('buffer_store_dwordx4 v[4:7], v%d, %s, s46 offen sc1' % (V_L16, srd(SRD_WS)))
        I('s_add_u32 s46, s46, 4096')
    a.label('L_hdone')
    I('s_waitcnt vmcnt(0) lgkmcnt(0)'); a.forget()
    I('s_barrier')
    I('s_cmp_lg_u32 s%d, 0' % S_W)
    I('s_cbranch_scc1 L_end')
    I('v_mov_b32 v4, 1')
    I('v_mov_b32 v5, 0')
    I('s_mov_b64 exec, 1')
    I('buffer_atomic_add v4, v5, %s, 0 offen sc1' % srd(SRD_DBG))
    if cfg.stamps:
        I('s_waitcnt vmcnt(0)'); a.vmq = []
        I('s_memrealtime s[100:101]')
        I('s_waitcnt lgkmcnt(0)'); a.smem_pending = set()
        I('s_lshl_b32 s40, s2, 8'); I('s_add_u32 s40, s40, %d' % WS_STAMP)
        I('v_mov_b32 v2, s98'); I('v_mov_b32 v3, s100')
        I('buffer_store_dwordx2 v[2:3], v5, %s, s40 offen' % srd(SRD_WS))
    a.label('L_end')
    I('s_endpgm')

def gen_stamps_out(a, cfg, n):
    I = a.I
    I('s_memrealtime s[100:101]')
    I('s_waitcnt lgkmcnt(0)'); a.smem_pending = set()
    I('s_lshl_b32 s40, s2, 2'); I('s_add_u32 s40, s40, s%d' % S_W); I('s_lshl_b32 s40, s40, 6')
    I('s_add_u32 s40, s40, %d' % WS_STAMP)
    I('v_mov_b32 v1, 0')
    I('s_mov_b64 exec, 1')
    for k in list(range(n)) + [9, 10]:
        I('v_mov_b32 v2, s%d' % (S_STAMP + 2 * k))
        I('buffer_store_dword v2, v1, %s, s40 offen offset:%d' % (srd(SRD_WS), 4 * k))
    I('s_mov_b64 exec, -1')

def build(cfg):
    a = Asm()
    if cfg.stop == 'entry': a.I('s_endpgm')
    gen_entry(a, cfg)
    gen_prologue(a, cfg)
    if cfg.stop == 'pro':
        if cfg.stamps: gen_stamps_out(a, cfg, len(cfg.stamps))
        gen_dump_y(a)
        a.I('s_branch L_end')
    else:
        import gen2
        gen2.gen_main(a, cfg)
    gen_helper(a, cfg)
    head = open('cdna_kernels/%s.s.ref' % NAME).read().split('; Override')[0] if False else ''
    src = '; generated by gen/gen.py\n'
    src += '; @launch grid=(%d,1,1) block=(256,1,1) lds=%d\n' % (NMAIN + NH, LDS_BYTES)
    src += '.amdgcn_target "amdgcn-amd-amdhsa--gfx950"\n.text\n.globl %s_kernel\n.p2align 8\n.type %s_kernel,@function\n%s_kernel:\n' % (NAME, NAME, NAME)
    src += a.text()
    src += 'L_code_end:\n'
    src += '''.section .rodata,"a"
.p2align 6
.amdhsa_kernel %s_kernel
  .amdhsa_next_free_vgpr 512
  .amdhsa_next_free_sgpr 102
  .amdhsa_accum_offset 256
  .amdhsa_group_segment_fixed_size 0
  .amdhsa_kernarg_size 72
  .amdhsa_user_sgpr_count 2
  .amdhsa_user_sgpr_kernarg_segment_ptr 1
  .amdhsa_system_sgpr_workgroup_id_x 1
.end_amdhsa_kernel
''' % NAME
    return src, a

if __name__ == '__main__':
    sys.modules['gen'] = sys.modules['__main__']
    cfg = Cfg()
    out = sys.argv[1] if len(sys.argv) > 1 else 'cdna_kernels/%s.s' % NAME
    for kv in sys.argv[2:]:
        k, v = kv.split('=')
        setattr(cfg, k, eval(v))
    if cfg.stamps is True: cfg.stamps = ['start', 'pre', 'pro', 'p1', 'sync', 's', 'end']
    if isinstance(cfg.stamps, str): cfg.stamps = cfg.stamps.split(',')
    src, a = build(cfg)
    open(out, 'w').write(src)
    print('instrs', a.count(), 'bytes', len(src), 'nops', dict(a.nops), 'waits', dict(a.nwaits))
```

```python
from asmlib import *
import gen as G
from gen import *

def gdest(eb, t):
    if eb == 0: return ('l', t)
    if eb == 1 and t == 0: return ('l', 7)
    if eb == 1: return ('v', 104 + 8 * (t - 1))
    if eb == 2: return ('v', 152 + 8 * t)
    if eb == 3: return ('a', 128 + 8 * t)
    if eb == 4: return ('a', 184 + 8 * t)
    return ('a', 240 + 8 * t) if t < 2 else ('a', 32 + 8 * (t - 2))
def w1reg(eb, ks):
    if eb == 0: return vr(V_W10 + 4 * ks, 4)
    if eb == 1: return vr(V_W11 + 4 * ks, 4)
    return ar((A_W1A if eb % 2 == 0 else A_W1B) + 4 * ks, 4)

STB2 = 40960
CNT_OFF = None
V_FLAG, V_SA = 102, 103
FA, FB = 0, 48
V_EW, V_ER, V_OUT, V_XL = 97, 98, 99, 102
V_S, V_RAW, V_TMP = 208, 216, 240
A_ACC = [0, 16]
A_BIAS = [72, 112]
A_X, A_ID, A_GL = 88, 100, 104
KORD = [11, 6, 7, 8, 9, 10, 4, 5, 2, 3, 0, 1]
SPIN_MAX = 1 << 18

def raw0_reg(ks, hr):
    if ks in (6, 7, 8): return V_RAW + (ks - 6) * 8 + 4 * hr
    if ks in (9, 10): return V_TMP + (ks - 9) * 8 + 4 * hr
    if ks == 11: return FA + 40 + 4 * hr
    return FB + ks * 8 + 4 * hr

def gen_main(a, cfg):
    I = a.I
    L = V_LANE
    ws = srd(SRD_WS)
    cnt_off = WS_SUM + cfg.R * 3072
    a.sect = 'p1'
    I('s_mul_i32 s40, s%d, 224' % S_R0)
    I('s_add_u32 s40, s40, s%d' % S_C0)
    I('s_mul_i32 s%d, s40, 384' % S_ROW)
    for t in range(1, 7): I('s_add_u32 s%d, s%d, %d' % (S_ROW + t, S_ROW + t - 1, 224 * 384))
    I('s_and_b32 s40, s2, %d' % (cfg.R - 1))
    I('s_mul_i32 s40, s40, 3072')
    I('s_mul_i32 s41, s%d, 768' % S_W)
    I('s_add_u32 s40, s40, s41')
    I('s_add_u32 s%d, s40, %d' % (S_AT, WS_SUM))
    I('s_mul_i32 s%d, s%d, 73728' % (S_W1F, S_W))
    I('s_mul_i32 s%d, s%d, 147456' % (S_W2, S_W))
    I('s_add_u32 s%d, s%d, %d' % (S_W2, S_W2, WS_W2))
    I('s_mov_b32 s6, 0xaaaaaaaa'); I('s_mov_b32 s7, 0xaaaaaaaa')
    I('v_and_b32 v%d, 0x19, v%d' % (V_AT, L))
    I('v_lshrrev_b32 v102, 5, v%d' % L)
    I('v_lshl_or_b32 v%d, v102, 2, v%d' % (V_AT, V_AT))
    I('v_lshrrev_b32 v102, 1, v%d' % L)
    I('v_and_b32 v102, 2, v102')
    I('v_or_b32 v%d, v%d, v102' % (V_AT, V_AT))
    I('v_lshlrev_b32 v%d, 2, v%d' % (V_AT, V_AT))
    I('v_and_b32 v102, 2, v%d' % L)
    I('v_lshlrev_b32 v102, 30, v102')
    I('v_or_b32 v%d, v%d, v102' % (V_AT, V_AT))
    I('buffer_load_dword v%d, off, %s, 0 sc1' % (V_FLAG, srd(SRD_DBG)), tag='flag')

    X = lambda n: V_X + 16 * (n % 3)
    Z = lambda n: V_Z + 16 * (n % 2)
    NS = 42
    def yread(q):
        n, ks = divmod(q, 12)
        if n >= NS: return
        t = n % 7
        base, off = (V_YA, t * ROWP) if t < 4 else (V_YB, (t - 4) * ROWP)
        I('ds_read_b128 %s, v%d offset:%d' % (ar(A_RING + 4 * (q % 8), 4), base, off + ks * 1024), tag='y%d' % q)
    def Treg(n): return 152 if n <= 7 else 208
    for q in range(7): yread(q)
    vm = {}
    def w1f_load(eb, ks):
        def f():
            if ks % 4 == 0: I('s_add_u32 s40, s%d, %d' % (S_W1F, WS_W1 + eb * 12288 + ks * 1024))
            I('buffer_load_dwordx4 %s, v%d, %s, s40 offen offset:%d sc1' % (w1reg(eb, ks), V_L16, ws, (ks % 4) * 1024), tag='w1f%d' % eb)
        return f
    for eb, st in ((2, 4), (3, 10), (4, 21), (5, 28)):
        for ks in range(12): vm.setdefault(st + ks // 2, []).append(w1f_load(eb, ks))
    def raw_load(cb, ks, hr, dst, sreg=41):
        def f():
            if hr == 0 or True:
                I('s_add_u32 s%d, s%d, %d' % (sreg, S_W2, cb * 24576 + ks * 2048))
            I('buffer_load_dwordx4 %s, v%d, %s, s%d offen offset:%d sc1' % (vr(dst, 4), V_L16, ws, sreg, hr * 1024), tag='raw%d_%d_%d' % (cb, ks, hr))
        return f
    def raw_pair(cb, ks, d0, d1, sreg=41):
        def f():
            I('s_add_u32 s%d, s%d, %d' % (sreg, S_W2, cb * 24576 + ks * 2048))
            I('buffer_load_dwordx4 %s, v%d, %s, s%d offen sc1' % (vr(d0, 4), V_L16, ws, sreg), tag='raw%d_%d_0' % (cb, ks))
            I('buffer_load_dwordx4 %s, v%d, %s, s%d offen offset:1024 sc1' % (vr(d1, 4), V_L16, ws, sreg), tag='raw%d_%d_1' % (cb, ks))
        return f
    if cfg.w2warm:
        def warm(k):
            def f():
                if k == 0:
                    I('s_lshr_b32 s42, s2, 3'); I('s_lshl_b32 s42, s42, 2'); I('s_add_u32 s42, s42, s%d' % S_W)
                    I('s_mul_i32 s42, s42, 6144'); I('s_add_u32 s42, s42, %d' % WS_W2)
                    I('s_min_u32 s42, s42, %d' % (WS_W2 + 4 * 147456 - 6144))
                if k == 4: I('s_add_u32 s42, s42, 4096')
                I('buffer_load_dwordx4 %s, v%d, %s, s42 offen offset:%d sc1' % (vr(V_RAW, 4), V_L16, ws, (k % 4) * 1024), tag='warm')
            return f
        for k in range(6): vm.setdefault(16 + k // 2, []).append(warm(k))
    for i, ks in enumerate((6, 7, 8, 9, 10)):
        vm.setdefault(35 + i, []).append(raw_pair(0, ks, raw0_reg(ks, 0), raw0_reg(ks, 1)))

    def sq_reduce(eb):
        S = V_SQ
        for k in range(8): I('v_permlane16_swap_b32 v%d, v%d' % (S + k, S + k + 8))
        for k in range(0, 8, 2): I('v_pk_add_f32 %s, %s, %s' % (vr(S + k, 2), vr(S + k, 2), vr(S + k + 8, 2)))
        for k in range(4): I('v_add_f32_dpp v%d, v%d, v%d row_ror:8 row_mask:0xf bank_mask:0x3' % (S + k, S + k, S + k))
        for k in range(4): I('v_add_f32_dpp v%d, v%d, v%d row_ror:8 row_mask:0xf bank_mask:0xc' % (S + k, S + k + 4, S + k + 4))
        for k in range(2): I('v_add_f32_dpp v%d, v%d, v%d row_half_mirror row_mask:0xf bank_mask:0x5' % (S + k, S + k, S + k))
        for k in range(2): I('v_add_f32_dpp v%d, v%d, v%d row_half_mirror row_mask:0xf bank_mask:0xa' % (S + k, S + k + 2, S + k + 2))
        I('v_cndmask_b32 v%d, v%d, v%d, s[6:7]' % (S + 2, S, S + 1))
        I('v_cndmask_b32 v%d, v%d, v%d, s[6:7]' % (S + 3, S + 1, S))
        I('v_add_f32_dpp v%d, v%d, v%d quad_perm:[1,0,3,2] row_mask:0xf bank_mask:0xf' % (S + 2, S + 3, S + 2))
        I('v_add_f32_dpp v%d, v%d, v%d quad_perm:[2,3,0,1] row_mask:0xf bank_mask:0xf' % (S + 4, S + 2, S + 2))
        I('buffer_atomic_add_f32 v%d, v%d, %s, s%d offen offset:%d' % (S + 4, V_AT, ws, S_AT, eb * 128), tag='atom')

    def cvt(n):
        eb, t = divmod(n, 7); k, r = gdest(eb, t)
        d = r if k == 'v' else Treg(n)
        for j in range(8): I('v_cvt_pk_bf16_f32 v%d, v%d, v%d' % (d + j, X(n) + 2 * j, X(n) + 2 * j + 1))
    def moves(n):
        if n < 0 or n >= NS: return [], []
        eb, t = divmod(n, 7); k, r = gdest(eb, t); T = Treg(n)
        if k == 'a': return [(lambda j=j: I('v_accvgpr_write_b32 a%d, v%d' % (r + j, T + j))) for j in range(8)], []
        if k == 'l': return [], [(lambda f=f: I('ds_write_b128 v%d, %s offset:%d' % (V_GL, vr(T + 4 * f, 4), r * 2048 + f * 1024), tag='gw')) for f in range(2)]
        return [], []

    for n in range(NS + 2):
        eb, t = divmod(n, 7)
        a.comment('W %d' % n); stamp(a, cfg, 'W%d' % n)
        TR = []
        if 0 <= n - 1 < NS: TR += [(lambda i=i: I('v_exp_f32 v%d, v%d' % (Z(n - 1) + i, Z(n - 1) + i))) for i in range(16)]
        if 0 <= n - 2 < NS: TR += [(lambda i=i: I('v_rcp_f32 v%d, v%d' % (Z(n - 2) + i, Z(n - 2) + i))) for i in range(16)]
        acw, dsw = moves(n - 3)
        vl = vm.get(n, [])
        if n < NS:
            if t == 0 and eb >= 2: a.wait_vm('w1f%d' % eb)
            for ks in range(12):
                q = 12 * n + ks
                if ks in cfg.ywaits: a.wait_lg('y%d' % (12 * n + cfg.ywaits[ks]))
                I('v_mfma_f32_32x32x16_bf16 %s, %s, %s, %s' % (vr(X(n), 16), w1reg(eb, ks), ar(A_RING + 4 * (q % 8), 4), '0' if ks == 0 else vr(X(n), 16)))
                yread(q + 7)
                if ks in (2, 5) and dsw: dsw.pop(0)()
                if ks in (8, 11) and vl: vl.pop(0)()
                for _ in range(2 if ks % 3 == 2 else 3):
                    if TR: TR.pop(0)()
                if ks % 3 == 2:
                    for _ in range(2):
                        if acw: acw.pop(0)()
            assert not vl
        for f in TR + acw + dsw: f()
        a.comment('P %d' % n); stamp(a, cfg, 'P%d' % n)
        if n == 3:
            a.wait_vm('flag')
            I('v_readfirstlane_b32 s4, v%d' % V_FLAG)
            I('s_cmp_lg_u32 s4, %d' % NH)
            I('s_cbranch_scc1 L_slow1')
            a.label('L_back1')
        if 0 <= n - 1 < NS:
            for j in range(0, 16, 2): I('v_pk_add_f32 %s, %s, s[%d:%d]' % (vr(Z(n - 1) + j, 2), vr(Z(n - 1) + j, 2), S_ONE, S_ONE + 1))
        m = n - 2
        if 0 <= m < NS:
            for j in range(0, 16, 2): I('v_pk_mul_f32 %s, %s, %s' % (vr(X(m) + j, 2), vr(X(m) + j, 2), vr(Z(m) + j, 2)))
            for j in range(0, 16, 2):
                if m % 7 == 0: I('v_pk_mul_f32 %s, %s, %s' % (vr(V_SQ + j, 2), vr(X(m) + j, 2), vr(X(m) + j, 2)))
                else: I('v_pk_fma_f32 %s, %s, %s, %s' % (vr(V_SQ + j, 2), vr(X(m) + j, 2), vr(X(m) + j, 2), vr(V_SQ + j, 2)))
            if m == NS - 1: sq_reduce(5)
            cvt(m)
        if n < NS:
            for j in range(0, 16, 2): I('v_pk_fma_f32 %s, %s, %s, s[%d:%d]' % (vr(Z(n) + j, 2), vr(X(n) + j, 2), vr(X(n) + j, 2), S_AP, S_AP + 1))
            for j in range(0, 16, 2): I('v_pk_mul_f32 %s, %s, %s neg_lo:[1,0] neg_hi:[1,0]' % (vr(Z(n) + j, 2), vr(X(n) + j, 2), vr(Z(n) + j, 2)))
        if 0 <= m < NS - 1 and m % 7 == 6: sq_reduce(m // 7)
    for f in moves(NS - 1)[0]: f()
    stamp(a, cfg, 'p1')

    a.sect = 'sync'
    for ks in (11, 4, 5, 2, 3, 0, 1): raw_pair(0, ks, raw0_reg(ks, 0), raw0_reg(ks, 1))()
    I('v_lshrrev_b32 v4, 5, v%d' % L)
    I('v_and_b32 v5, 31, v%d' % L)
    I('s_movk_i32 s42, 384')
    I('s_lshl_b32 s43, s%d, 4' % S_W)
    I('v_mul_u32_u24 v%d, s42, v5' % V_XL)
    I('v_lshlrev_b32 v6, 31, v4')
    I('v_add3_u32 v%d, v%d, s43, v6' % (V_XL, V_XL))
    def xload(j):
        if j >= 42: return
        cb, t = divmod(j, 7)
        if 'x' in getattr(cfg, 'abl', '').split('+') and j > 1: return
        I('buffer_load_dwordx4 %s, v%d, %s, s%d offen offset:%d' % (ar(A_X + 4 * (j % 3), 4), V_XL, srd(SRD_X), S_ROW + t, cb * 64), tag='x%d' % j)
    xload(0); xload(1)
    I('v_lshlrev_b32 v7, 4, v4')
    I('s_mul_i32 s44, s%d, 768' % S_W)
    I('s_add_u32 s44, s44, %d' % WS_BIAS)
    I('v_mov_b32 v%d, v7' % L)
    V_BO = L
    def bias_load(cb, g):
        I('buffer_load_dwordx4 %s, v%d, %s, s44 offen offset:%d sc1' % (ar(A_BIAS[cb % 2] + 4 * g, 4), V_BO, ws, cb * 128 + g * 32), tag='bias%d' % cb)
    for g in range(4): bias_load(0, g)
    I('v_lshrrev_b32 v8, 4, v%d' % V_L16)
    I('v_lshrrev_b32 v9, 4, v8')
    I('v_lshlrev_b32 v9, 7, v9')
    I('v_and_b32 v10, 7, v8')
    I('v_lshl_add_u32 v9, v10, 4, v9')
    I('s_mul_i32 s45, s%d, 384' % S_W)
    I('buffer_load_dwordx4 v[0:3], v9, %s, s45 offen' % srd(SRD_GAM), tag='gam')
    stamp(a, cfg, 'sy0')
    a.wait_vm('atom')
    stamp(a, cfg, 'sy1')
    I('s_barrier')
    stamp(a, cfg, 'sy2')
    I('s_cmp_lg_u32 s%d, 0' % S_W)
    I('s_cbranch_scc1 L_nopoll')
    save = (list(a.vmq), list(a.lgq))
    I('s_and_b32 s46, s2, 7')
    I('s_lshl_b32 s46, s46, 8')
    I('s_add_u32 s46, s46, %d' % cnt_off)
    I('v_mov_b32 v11, 1')
    I('v_lshlrev_b32 v12, 8, v8')
    I('s_mov_b64 exec, 1')
    I('buffer_atomic_add v11, off, %s, s46 sc1' % ws)
    I('s_mov_b64 exec, 0xff')
    I('s_mov_b32 s46, %d' % cnt_off)
    I('s_mov_b32 s4, %d' % SPIN_MAX)
    a.label('L_poll')
    I('buffer_load_dword v11, v12, %s, s46 offen sc1' % ws)
    I('s_waitcnt vmcnt(0)'); a.vmq = []
    I('v_cmp_ne_u32 vcc, 28, v11')
    I('s_sub_u32 s4, s4, 1')
    I('s_cbranch_scc1 L_polled')
    I('s_cbranch_vccnz L_poll')
    a.label('L_polled')
    if cfg.marks:
        I('s_mov_b64 exec, 1')
        I('v_mov_b32 v11, s4')
        I('v_mov_b32 v12, 1')
        I('v_cmp_eq_u32 vcc, -1, v11')
        I('s_and_b64 exec, vcc, exec')
        I('buffer_atomic_add v12, off, %s, 0 offset:12 sc1' % srd(SRD_DBG))
        a.vmq = []
    I('s_mov_b64 exec, -1')
    a.label('L_nopoll')
    stamp(a, cfg, 'sy3')
    a.vmq, a.lgq = save
    I('s_mul_i32 s46, s%d, 4608' % S_W)
    I('s_add_u32 s46, s46, %d' % EXB)
    I('s_movk_i32 s47, 576')
    I('v_mul_u32_u24 v%d, s47, v4' % V_EW)
    I('v_lshl_add_u32 v%d, v5, 4, v%d' % (V_EW, V_EW))
    I('v_add_u32 v%d, s46, v%d' % (V_EW, V_EW))
    I('v_lshrrev_b32 v11, 3, v8')
    I('s_lshl_b32 s46, s%d, 3' % S_W)
    I('v_add_u32 v11, s46, v11')
    I('v_mul_u32_u24 v%d, s47, v10' % V_ER)
    I('v_lshl_add_u32 v%d, v11, 4, v%d' % (V_ER, V_ER))
    I('v_add_u32 v%d, %d, v%d' % (V_ER, EXB, V_ER))
    I('v_mul_u32_u24 v%d, s42, v11' % V_OUT)
    I('v_lshl_add_u32 v%d, v10, 3, v%d' % (V_OUT, V_OUT))
    I('s_lshl_b32 s46, s%d, 10' % S_W)
    I('s_add_u32 s46, s46, %d' % STB2)
    I('v_add_u32 v%d, s46, v7' % V_SA)
    I('v_add_u32 v13, s46, v%d' % V_L16)
    I('s_lshl_b32 s46, s%d, 3' % S_W)
    I('v_subrev_u32 v14, s46, v8')
    I('v_and_b32 v15, 1, v8')
    I('v_lshlrev_b32 v15, 4, v15')
    I('v_mov_b32 v16, 0x3f80')
    I('v_lshlrev_b32 v15, v15, v16')
    I('v_lshrrev_b32 v14, 1, v14')
    for d in range(4):
        I('v_cmp_eq_u32 vcc, %d, v14' % d)
        I('v_cndmask_b32 v16, 0, v15, vcc')
        I('v_accvgpr_write_b32 a%d, v16' % (A_ID + d))
    I('v_and_b32 v14, 8, v8')
    I('v_lshlrev_b32 v14, 1, v14')
    I('v_xor_b32 v14, 16, v14')
    I('v_cmp_gt_u32 s[66:67], 48, v8')
    I('v_mov_b32 v15, 0x%x' % BIG)
    I('v_cndmask_b32 v15, v15, v%d, s[66:67]' % V_L16)
    for i in range(4):
        I('v_lshlrev_b32 v%d, v14, v%d' % (i, i))
        I('v_and_b32 v%d, 0xffff0000, v%d' % (i, i))
    I('s_mul_i32 s46, s%d, 768' % S_W)
    I('s_add_u32 s46, s46, %d' % WS_SUM)
    I('s_mov_b32 s48, 0x%x' % f2u(1.0 / (ALPHA * ALPHA)))
    I('s_lshl_b32 s49, s%d, 2' % S_W)
    I('v_mov_b32 v14, s49')
    I('v_mov_b32 v12, 0x%x' % f2u(1e-6))
    I('s_barrier')
    stamp(a, cfg, 'sync')
    SB = 4
    regs = [16, 20, 24, 28, 32, 36, 4, 8]
    for r in range(cfg.R):
        if r and r % 2 == 0: I('s_add_u32 s46, s46, 6144')
        I('buffer_load_dwordx4 %s, v15, %s, s46 offen offset:%d sc1' % (vr(regs[r], 4), ws, (r % 2) * 3072), tag='sum')
    def padd(d, s_):
        for k in (0, 2): I('v_pk_add_f32 %s, %s, %s' % (vr(d + k, 2), vr(d + k, 2), vr(s_ + k, 2)))
    a.wait_vm('sum')
    padd(16, 20); padd(24, 28); padd(32, 36); padd(4, 8); padd(16, 24); padd(32, 4); padd(16, 32)
    for i in range(4): I('v_fma_f32 v%d, v%d, s48, v12' % (16 + i, 16 + i))
    for i in range(4): I('v_sqrt_f32 v%d, v%d' % (16 + i, 16 + i))
    I('v_add_f32 v20, v16, v17')
    I('v_add_f32 v21, v18, v19')
    I('v_add_f32 v20, v20, v21')
    I('v_cndmask_b32 v20, 0, v20, s[66:67]')
    for i in range(4): I('v_mul_f32 v%d, v%d, v%d' % (i, i, 16 + i)) if i < 2 else None
    I('v_add_f32_dpp v20, v20, v20 quad_perm:[1,0,3,2] row_mask:0xf bank_mask:0xf')
    for i in range(2, 4): I('v_mul_f32 v%d, v%d, v%d' % (i, i, 16 + i))
    I('v_add_f32_dpp v20, v20, v20 quad_perm:[2,3,0,1] row_mask:0xf bank_mask:0xf')
    I('v_add_f32_dpp v20, v20, v20 row_half_mirror row_mask:0xf bank_mask:0xf')
    I('v_add_f32_dpp v20, v20, v20 row_ror:8 row_mask:0xf bank_mask:0xf')
    I('v_mov_b32 v21, v20')
    I('v_permlane16_swap_b32 v20, v21')
    I('v_add_f32 v20, v20, v21')
    I('v_mov_b32 v21, v20')
    I('v_permlane32_swap_b32 v20, v21')
    I('v_add_f32 v20, v20, v21')
    I('ds_write_b32 v14, v20')
    a.wait_lg(n=0)
    I('s_barrier')
    I('v_mov_b32 v14, 0')
    I('ds_read_b128 v[20:23], v14')
    I('v_add_f32 v20, v20, v21')
    I('v_add_f32 v22, v22, v23')
    I('v_add_f32 v20, v20, v22')
    I('v_fma_f32 v20, v20, 0x%x, v12' % f2u(1.0 / 768)) if False else None
    I('v_mov_b32 v21, 0x%x' % f2u(1.0 / 768))
    I('v_fma_f32 v20, v20, v21, v12')
    I('v_rcp_f32 v20, v20')
    I('v_mov_b32 v21, 0x%x' % f2u(1.0 / ALPHA))
    I('v_mul_f32 v20, v20, v21')
    for i in range(4): I('v_fma_f32 v%d, v%d, v20, v21' % (i, i))
    I('ds_write_b128 v13, v[0:3]', tag='sw')
    a.wait_lg(n=0)
    stamp(a, cfg, 's')

    a.sect = 'p2'
    abl = set(getattr(cfg, 'abl', '').split('+')) - {''}
    I0 = I
    def I(text, tag=None):
        if 'st' in abl and tag == 'st': return
        if 'x' in abl and tag and tag.startswith('x') and tag[1:].isdigit(): return
        if 'raw' in abl and tag == 'raw': return
        if 'bar' in abl and text == 's_barrier': return
        if 'exw' in abl and tag == 'exw': return
        if 'exr' in abl and tag == 'exr': return
        if 'gl' in abl and tag == 'gl': return
        if 's' in abl and tag == 's': return
        if 'valu' in abl and text.startswith(('v_mul', 'v_add', 'v_cvt')): return
        if 'bias' in abl and tag and tag.startswith('bias'): return
        I0(text, tag)
    F = lambda cb: FA if cb % 2 == 0 else FB
    scnt = [0]
    def sread(ks, hr):
        slot = scnt[0] % 2; scnt[0] += 1
        I('ds_read_b128 %s, v%d offset:%d' % (vr(V_S + 4 * slot, 4), V_SA, ks * 64 + hr * 32), tag='s')
        return V_S + 4 * slot
    def prep(raw, sreg, dst, rev=False):
        for i in range(4): I('v_mul_f32 v%d, v%d, v%d' % (raw + i, raw + i, sreg + i))
        for d in range(2): I('v_cvt_pk_bf16_f32 v%d, v%d, v%d' % (dst + d, raw + 2 * d, raw + 2 * d + 1))
    def greg(ks, t):
        eb, half = divmod(ks, 2); k, r = gdest(eb, t)
        if k == 'l': return ar(A_GL + 4 * half, 4)
        return (vr if k == 'v' else ar)(r + 4 * half, 4)
    def gread(idx, f):
        I('ds_read_b128 %s, v%d offset:%d' % (ar(A_GL + 4 * f, 4), V_GL, idx * 2048 + f * 1024), tag='gl')
    def exw(j, g):
        I('ds_write_b128 v%d, %s offset:%d' % (V_EW, ar(A_ACC[j % 2] + 4 * g, 4), (j % 2) * 18432 + g * 1152), tag='exw')
    def exr(j, sw):
        I('ds_read_b128 %s, v%d offset:%d' % (vr(V_TMP + 4 * sw, 4), V_ER, (j % 2) * 18432 + sw * 4608), tag='exr')
    def fin(j):
        cb, t = divmod(j, 7); T = V_TMP
        Fs = []
        for (d, s_) in ((0, 4), (8, 12), (0, 8)):
            for i in range(4): Fs.append(lambda d=d, s_=s_, i=i: I('v_add_f32 v%d, v%d, v%d' % (T + d + i, T + d + i, T + s_ + i)))
        Fs.append(lambda: I('v_cvt_pk_bf16_f32 v%d, v%d, v%d' % (T, T, T + 1)))
        Fs.append(lambda: I('v_cvt_pk_bf16_f32 v%d, v%d, v%d' % (T + 1, T + 2, T + 3)))
        Fs.append(lambda: I('buffer_store_dwordx2 %s, v%d, %s, s%d offen offset:%d%s' % (vr(T, 2), V_OUT, srd(SRD_OUT), S_ROW + t, cb * 64, cfg.out_flags), tag='st'))
        return Fs
    units = {}
    for cb in range(1, 6): units[cb] = [(ks, hr) for ks in KORD for hr in range(2)]
    allu = [(cb, ks, hr) for cb in range(1, 6) for (ks, hr) in units[cb]]
    def ublock(i):
        cb, k = divmod(i, 24)
        if cb == 0: return 1 + k // 4
        return cb * 7 + (k * 7) // 24
    sched = {}
    for i in range(len(allu)): sched.setdefault(ublock(i), []).append(i)
    ld_next = [0]
    def rawissue(upto):
        while ld_next[0] < min(upto, len(allu)):
            i = ld_next[0]; cb, ks, hr = allu[i]
            if hr == 0: I('s_add_u32 s41, s%d, %d' % (S_W2, cb * 24576 + ks * 2048))
            I('buffer_load_dwordx4 %s, v%d, %s, s41 offen offset:%d sc1' % (vr(V_RAW + 4 * (i % 6), 4), V_L16, ws, hr * 1024), tag='raw')
            ld_next[0] += 1
    for j in range(42):
        cb, t = divmod(j, 7)
        a.comment('block %d' % j); stamp(a, cfg, 'B%d' % j)
        acc = ar(A_ACC[j % 2], 16)
        order = list(KORD)
        if t == 0: order = [11, 6, 7, 8, 9, 2, 3, 10, 4, 5, 0, 1]
        RES = 6 if t else 8
        mf = [('k', ks) for ks in order]; mf.insert(RES, ('x', 0))
        ds = {k: [] for k in range(13)}; post = {k: [] for k in range(13)}
        if t == 0:
            ds[0].append(lambda: gread(7, 0)); ds[1].append(lambda: gread(7, 1))
            ds[6].append(lambda: gread(0, 0)); ds[7].append(lambda: gread(0, 1))
        else:
            ds[0].append(lambda: gread(t, 0)); ds[1].append(lambda: gread(t, 1))
        if j >= 2:
            fl = fin(j - 2)
            post[0] += fl[0:4]; post[1] += fl[4:8]; post[2] += fl[8:]
        if j >= 1:
            for g in range(4): ds[3 + g].append(lambda g=g: exw(j - 1, g))
            def bar():
                a.wait_lg('exw'); I('s_barrier')
            post[8].append(bar)
            for sw in range(4): ds[9 + sw].append(lambda sw=sw: exr(j - 1, sw))
        post[RES].append(lambda: xload(j + 2))
        if t == 3 and cb < 5:
            for g in range(4): post[3 + g].append(lambda g=g: bias_load(cb + 1, g))
        if j == 0:
            pend = []
            seqk = [ks for (k, ks) in mf if k == 'k']
            sr_ = {}
            def both(ks):
                sr_[(ks, 0)] = sread(ks, 0); sr_[(ks, 1)] = sread(ks, 1)
            both(seqk[0])
            pos = 0
            for (k, ks) in mf:
                if k == 'k':
                    hrs = (1, 0) if ks == 11 else (0, 1)
                    if ks == 11:
                        for hr in (0, 1):
                            for i in range(4): I('v_mul_f32 v%d, v%d, v%d' % (raw0_reg(ks, hr) + i, raw0_reg(ks, hr) + i, sr_[(ks, hr)] + i))
                        nx = seqk[seqk.index(ks) + 1]; both(nx)
                        for d in (3, 2, 1, 0): I('v_cvt_pk_bf16_f32 v%d, v%d, v%d' % (FA + 44 + d, FA + 40 + 2 * d, FA + 41 + 2 * d))
                    else:
                        for hr in (0, 1):
                            for i in range(4): I('v_mul_f32 v%d, v%d, v%d' % (raw0_reg(ks, hr) + i, raw0_reg(ks, hr) + i, sr_[(ks, hr)] + i))
                        if seqk.index(ks) + 1 < 12: both(seqk[seqk.index(ks) + 1])
                        for hr in (0, 1):
                            for d in range(2): I('v_cvt_pk_bf16_f32 v%d, v%d, v%d' % (FA + 4 * ks + 2 * hr + d, raw0_reg(ks, hr) + 2 * d, raw0_reg(ks, hr) + 2 * d + 1))
                    I('v_mfma_f32_32x32x16_bf16 %s, %s, %s, %s' % (acc, vr(FA + 4 * ks, 4), greg(ks, t), ar(A_BIAS[0], 16) if pos == 0 else acc))
                    if ks == 8: pass
                else:
                    I('v_mfma_f32_32x32x16_bf16 %s, %s, %s, %s' % (acc, ar(A_ID, 4), ar(A_X + 4 * (j % 3), 4), acc))
                for f in ds[pos] + post[pos]: f()
                if pos == 4: rawissue(3)
                if pos == 8: rawissue(6)
                pos += 1
            continue
        us = sched.get(j, [])
        if len(us) == 4: uslots, sslots, sregs = [7, 8, 10, 11], [2, 2, 7, 8], [V_S, V_TMP + 12, V_S + 4, V_S]
        else: uslots, sslots, sregs = [7, 10, 11], [2, 7, 8], [V_S, V_S + 4, V_S]
        for i, u in enumerate(us):
            cbn, ks, hr = allu[u]
            ds[sslots[i]].append(lambda ks=ks, hr=hr, r=sregs[i]: I('ds_read_b128 %s, v%d offset:%d' % (vr(r, 4), V_SA, ks * 64 + hr * 32), tag='s'))
            def pr(u=u, cbn=cbn, ks=ks, hr=hr, r=sregs[i]):
                prep(V_RAW + 4 * (u % 6), r, F(cbn) + 4 * ks + 2 * hr)
                rawissue(u + 7)
            post[uslots[i]].insert(0, pr)
        for pos, (k, ks) in enumerate(mf):
            if k == 'k':
                I('v_mfma_f32_32x32x16_bf16 %s, %s, %s, %s' % (acc, vr(F(cb) + 4 * ks, 4), greg(ks, t), ar(A_BIAS[cb % 2], 16) if pos == 0 else acc))
            else:
                I('v_mfma_f32_32x32x16_bf16 %s, %s, %s, %s' % (acc, ar(A_ID, 4), ar(A_X + 4 * (j % 3), 4), acc))
            for f in ds[pos] + post[pos]: f()
    for f in fin(40): f()
    for g in range(4): exw(41, g)
    a.wait_lg('exw'); I('s_barrier')
    for sw in range(4): exr(41, sw)
    for f in fin(41): f()
    stamp(a, cfg, 'end')
    if cfg.stamps: gen_stamps_out(a, cfg, len(cfg.stamps))
    I('s_endpgm')
    a.forget()
    a.label('L_slow1')
    I('s_mov_b32 s5, %d' % SPIN_MAX)
    if cfg.marks:
        I('s_mov_b64 exec, 1')
        I('v_mov_b32 v%d, 1' % V_FLAG)
        I('buffer_atomic_add v%d, off, %s, 0 offset:4 sc1' % (V_FLAG, srd(SRD_DBG)))
        I('s_waitcnt vmcnt(0)'); a.vmq = []
        I('s_mov_b64 exec, -1')
    a.label('L_slow1b')
    I('s_sleep 2')
    I('buffer_load_dword v%d, off, %s, 0 sc1' % (V_FLAG, srd(SRD_DBG)))
    I('s_waitcnt vmcnt(0)'); a.vmq = []
    I('v_readfirstlane_b32 s4, v%d' % V_FLAG)
    I('s_sub_u32 s5, s5, 1')
    I('s_cbranch_scc1 %s' % ('L_slow1c' if cfg.marks else 'L_back1'))
    I('s_cmp_lg_u32 s4, %d' % NH)
    I('s_cbranch_scc1 L_slow1b')
    I('s_branch L_back1')
    if cfg.marks:
        a.label('L_slow1c')
        I('s_mov_b64 exec, 1')
        I('v_mov_b32 v%d, 1' % V_FLAG)
        I('buffer_atomic_add v%d, off, %s, 0 offset:8 sc1' % (V_FLAG, srd(SRD_DBG)))
        I('s_waitcnt vmcnt(0)'); a.vmq = []
        I('s_mov_b64 exec, -1')
        I('s_branch L_back1')
```

```python
import sys, math, struct
from asmlib import *

NAME = 'standalone__modern_conv_block_convnext_v2__vision'
def f2u(x): return struct.unpack('<I', struct.pack('<f', x))[0]

class Cfg:
    stop = None
    stamps = False
    R = 8
    out_flags = ' sc1'
    prefetch_code = True
    w2warm = True
    marks = False
    rt = False
    xfl = ''
    x2fl = ''
    ywaits = {0: 6, 7: 9, 10: 11}

ALPHA = 0.1029432397 ** (1.0 / 3.0)
APRIME = 2.302208198 / ALPHA
NMAIN = 224
NH = 29
XBYTES = 224 * 224 * 384
WS_W1 = 0
WS_W2 = 0x48000
WS_BIAS = 0xD8000
WS_SUM = 0xD9000
WS_DUMP = 0x200000
WS_STAMP = 0x100000
WS_SIZE = 268435456
HB = 2048
ROWP = 13056
GB = HB + 7 * ROWP
EXB = 2048
STB = 40960
BTB = 44032
LDS_BYTES = 163840
BIG = 0x80000000

S_W = 3
SRD_X, SRD_DW, SRD_W1, SRD_WS, SRD_OUT, SRD_GAM, SRD_DBG = 8, 12, 16, 20, 24, 28, 32
S_R0, S_C0, S_XB = 36, 37, 38
S_T0 = 40
S_ONE, S_AP = 60, 62
S_PLO, S_PHI = 64, 65
S_EX = 66
S_ROW, S_AT, S_W1F, S_W2 = 70, 77, 78, 79
S_STAMP = 80

V_X, V_Z, V_SQ = 0, 48, 80
V_LANE, V_YA, V_YB, V_AT, V_L16, V_GL = 96, 97, 98, 99, 100, 101
V_W10, V_W11 = 160, 208
V_SPARE = 159
A_RING = 0
A_W1A, A_W1B = 32, 80
A_G = 128

def srd(b): return 's[%d:%d]' % (b, b + 3)

def stamp(a, cfg, name):
    if cfg.stamps and name in cfg.stamps:
        idx = cfg.stamps.index(name)
        a.I('%s s[%d:%d]' % ('s_memrealtime' if cfg.rt else 's_memtime', S_STAMP + 2 * idx, S_STAMP + 2 * idx + 1))

def gen_entry(a, cfg):
    I = a.I
    a.sect = 'entry'
    I('s_load_dwordx2 s[8:9], s[0:1], 0')
    I('s_load_dwordx2 s[12:13], s[0:1], 8')
    I('s_load_dwordx2 s[16:17], s[0:1], 16')
    I('s_load_dwordx2 s[20:21], s[0:1], 64')
    I('s_load_dwordx2 s[32:33], s[0:1], 56')
    stamp(a, cfg, 'start')
    if cfg.stamps: I('s_memrealtime s[98:99]')
    I('v_lshrrev_b32 v1, 6, v0')
    I('v_and_b32 v%d, 63, v0' % V_LANE)
    I('v_readfirstlane_b32 s%d, v1' % S_W)
    I('s_mov_b32 s18, %d' % (192 * 768 * 2))
    I('s_mov_b32 s19, 0x20000')
    I('s_mov_b32 s22, %d' % WS_SIZE)
    I('s_mov_b32 s23, 0x20000')
    I('s_mov_b32 s34, 256')
    I('s_mov_b32 s35, 0x20000')
    I('s_cmp_ge_u32 s2, %d' % NMAIN)
    I('s_cbranch_scc1 L_helper')

def gen_prologue(a, cfg):
    I = a.I
    a.sect = 'pro'
    L = V_LANE
    I('s_mov_b32 s10, %d' % XBYTES)
    I('s_mov_b32 s11, 0x20000')
    I('s_mov_b32 s14, 3456')
    I('s_mov_b32 s15, 0x20000')
    I('v_and_b32 v20, 15, v%d' % L)
    I('v_bfe_u32 v21, v%d, 4, 1' % L)
    I('v_lshlrev_b32 v22, 1, v20')
    I('v_mad_u32_u24 v23, v21, 384, v22')
    a.ins.pop()
    I('s_movk_i32 s40, 384')
    I('s_movk_i32 s41, 1152')
    I('v_mad_u32_u24 v23, v21, s40, v22')
    I('v_mad_u32_u24 v22, v21, s41, v22')
    I('s_and_b32 s42, s2, 7')
    I('s_lshr_b32 s43, s2, 3')
    I('s_mul_i32 s44, s43, 37')
    I('s_lshr_b32 s44, s44, 8')
    I('s_mul_i32 s45, s44, 7')
    I('s_sub_u32 s45, s43, s45')
    I('s_lshl_b32 s42, s42, 2')
    I('s_add_u32 s42, s42, s44')
    I('s_mul_i32 s%d, s42, 7' % S_R0)
    I('s_lshl_b32 s%d, s45, 5' % S_C0)
    I('s_mul_i32 s46, s%d, 96' % S_W)
    for pi in range(5):
        for cg in range(3):
            if pi < 3: va, off = 22, pi * 384 + cg * 32
            else: va, off = 23, (6 if pi == 3 else 8) * 384 + cg * 32
            I('buffer_load_ushort v%d, v%d, %s, s46 offen offset:%d' % (pi * 3 + cg, va, srd(SRD_DW), off), tag='dw')
    I('s_lshl_b32 s47, s%d, 3' % S_W)
    I('s_add_u32 s48, s47, 1')
    I('s_movk_i32 s49, 171')
    for j in range(3):
        I('v_add_u32 v24, %d, v%d' % (64 * j, L))
        I('v_mul_u32_u24 v25, s49, v24')
        I('v_lshrrev_b32 v25, 12, v25')
        I('v_mul_u32_u24 v26, 24, v25')
        I('v_sub_u32 v26, v24, v26')
        I('v_add_u32 v27, s48, v25')
        I('v_bfe_u32 v27, v27, 1, 3')
        I('v_xor_b32 v26, v26, v27')
        I('v_add_u32 v25, s47, v25')
        I('v_mul_u32_u24 v25, s40, v25')
        I('v_lshl_add_u32 v25, v26, 4, v25')
        I('v_subrev_u32 v%d, %d, v25' % (63 + j, 1024 * j))
    I('s_mul_i32 s50, s%d, 224' % S_R0)
    I('s_add_u32 s50, s50, s%d' % S_C0)
    I('s_sub_u32 s50, s50, 224')
    I('s_mul_i32 s%d, s50, 384' % S_XB)
    I('s_mul_i32 s51, s%d, 3072' % S_W)
    I('s_add_u32 s51, s51, %d' % (HB + 384))
    def row(hr):
        if hr == 0:
            I('s_cmp_eq_u32 s%d, 0' % S_R0)
            I('s_cselect_b32 s52, 0x%x, s%d' % (0x7fff0000, S_XB))
            I('s_mov_b32 m0, s51')
        else:
            I('s_add_u32 s52, s%d, %d' % (S_XB, hr * 224 * 384))
            I('s_add_u32 m0, s51, %d' % (hr * ROWP))
        for j in range(3):
            I('buffer_load_dwordx4 v%d, %s, s52 offen offset:%d%s lds' % (63 + j, srd(SRD_X), 1024 * j, cfg.xfl), tag='row%d' % hr)
    stamp(a, cfg, 'i0')
    for hr in range(3): row(hr)
    stamp(a, cfg, 'i1')
    I('v_cmp_le_u32 vcc, 24, v%d' % L)
    I('v_cndmask_b32 v24, 0, 1, vcc')
    I('v_mul_u32_u24 v25, 24, v24')
    I('v_sub_u32 v25, v%d, v25' % L)
    I('v_lshlrev_b32 v25, 4, v25')
    I('s_mov_b32 exec_hi, 0xffff')
    for i in range(3):
        I('s_add_u32 s53, s%d, %d' % (S_W, 4 * i))
        I('s_mul_i32 s54, s53, %d' % (224 * 384))
        I('s_add_u32 s54, s54, s%d' % S_XB)
        I('s_add_u32 s54, s54, %d' % ((-224 + 32) * 384 & 0xffffffff))
        I('s_add_u32 s55, s54, %d' % (191 * 384))
        I('s_add_u32 s56, s%d, s53' % S_R0)
        I('s_sub_u32 s57, s56, 2')
        I('s_cmp_lt_u32 s57, 224'); I('s_cselect_b32 s54, s54, 0x%x' % BIG)
        I('s_sub_u32 s57, s53, 1')
        I('s_cmp_lt_u32 s57, 9'); I('s_cselect_b32 s54, s54, 0x%x' % BIG)
        I('s_cmp_lt_u32 s%d, 192' % S_C0); I('s_cselect_b32 s54, s54, 0x%x' % BIG)
        I('s_sub_u32 s57, s56, 1')
        I('s_cmp_lt_u32 s57, 224'); I('s_cselect_b32 s55, s55, 0x%x' % BIG)
        I('s_cmp_lt_u32 s53, 9'); I('s_cselect_b32 s55, s55, 0x%x' % BIG)
        I('s_cmp_gt_u32 s%d, 0' % S_C0); I('s_cselect_b32 s55, s55, 0x%x' % BIG)
        I('s_sub_u32 s55, s55, s54')
        I('v_mul_lo_u32 v26, v24, s55')
        I('v_add3_u32 v26, v26, s54, v25')
        I('s_mul_i32 s53, s53, %d' % ROWP)
        I('s_add_u32 m0, s53, %d' % (HB - 384))
        I('buffer_load_dwordx4 v26, %s, 0 offen lds' % srd(SRD_X), tag='edge')
    I('s_mov_b32 exec_hi, -1')
    for hr in range(3, 6): row(hr)
    stamp(a, cfg, 'i2')
    I('v_lshrrev_b32 v24, 5, v%d' % L)
    I('v_and_b32 v25, 31, v%d' % L)
    I('v_lshlrev_b32 v25, 2, v25')
    I('s_movk_i32 s53, %d' % (8 * 1536))
    I('v_mad_u32_u24 v66, v24, s53, v25')
    I('v_add_u32 v67, %d, v66' % (3 * 1536))
    I('v_add_u32 v68, %d, v66' % (6 * 1536))
    I('s_mul_i32 s58, s%d, 384' % S_W)
    w1q = []
    def mk(ks, i):
        def f():
            if i == 0 and ks > 0: I('s_add_u32 s58, s58, 24576')
            k = ks * 4 + i // 2
            if i % 2 == 0: dst = V_W10 + k + 1 if k < 47 else V_SPARE
            else: dst = V_W11 + k
            I('buffer_load_dword v%d, v%d, %s, s58 offen offset:%d' % (dst, 66 + i // 3, srd(SRD_W1), (i % 3) * 1536), tag='w1')
        return f
    for ks in range(12):
        for i in range(8): w1q.append(mk(ks, i))
    def w1issue(n):
        for _ in range(n):
            if w1q: w1q.pop(0)()
    permq = list(range(48))
    def perm1():
        k = permq.pop(0)
        A = V_W10 + k + 1 if k < 47 else V_SPARE
        B = V_W11 + k
        I('v_perm_b32 v%d, v%d, v%d, s%d' % (V_W10 + k, B, A, S_PLO))
        I('v_perm_b32 v%d, v%d, v%d, s%d' % (B, B, A, S_PHI))
    w1issue(24)
    stamp(a, cfg, 'i3')
    I('s_mov_b32 s%d, 0x05040100' % S_PLO)
    I('s_mov_b32 s%d, 0x07060302' % S_PHI)
    I('s_load_dwordx2 s[24:25], s[0:1], 48')
    I('s_load_dwordx2 s[28:29], s[0:1], 32')
    I('s_mov_b32 s26, %d' % XBYTES); I('s_mov_b32 s27, 0x20000')
    I('s_mov_b32 s30, 1536'); I('s_mov_b32 s31, 0x20000')
    I('s_mov_b32 s%d, 1.0' % S_ONE); I('s_mov_b32 s%d, 1.0' % (S_ONE + 1))
    I('s_mov_b32 s%d, 0x%x' % (S_AP, f2u(APRIME))); I('s_mov_b32 s%d, 0x%x' % (S_AP + 1, f2u(APRIME)))
    I('v_lshrrev_b32 v24, 5, v%d' % L)
    I('s_mul_i32 s53, s%d, 6' % S_W)
    I('v_add_u32 v24, s53, v24')
    I('s_movk_i32 s54, %d' % ROWP)
    I('v_mul_u32_u24 v28, s54, v21')
    for pi in range(5):
        if pi < 3: I('v_add_u32 v25, %d, v20' % pi)
        elif pi == 3: I('v_add_u32 v25, v20, v21')
        else: I('v_add_u32 v25, 2, v20')
        I('v_bfe_u32 v26, v25, 1, 3')
        I('v_mul_u32_u24 v25, s40, v25')
        if pi < 3: I('v_add3_u32 v25, v25, v28, %s' % 's59' if False else 'v_add_u32 v25, v25, v28')
        I('v_add_u32 v25, %d, v25' % (HB + (2 * ROWP if pi >= 3 else 0)))
        for cg in range(3):
            I('v_add_u32 v27, %d, v24' % (2 * cg))
            I('v_xor_b32 v27, v27, v26')
            I('v_lshl_add_u32 v%d, v27, 4, v25' % (48 + pi * 3 + cg))
    I('v_lshrrev_b32 v25, 5, v%d' % L)
    I('v_lshlrev_b32 v25, 9, v25')
    I('v_lshl_add_u32 v25, v20, 4, v25')
    I('v_lshl_add_u32 v25, v21, 3, v25')
    I('s_mul_i32 s53, s%d, 3072' % S_W)
    I('s_add_u32 s53, s53, %d' % HB)
    I('v_add_u32 v69, s53, v25')
    I('v_lshlrev_b32 v%d, 4, v%d' % (V_L16, L))
    I('s_lshl_b32 s53, s%d, 2' % S_W)
    I('v_add_u32 v70, s53, v%d' % V_L16)
    I('v_add_u32 v%d, %d, v%d' % (V_YA, HB, V_L16))
    I('v_add_u32 v%d, %d, v%d' % (V_YB, HB + 4 * ROWP, V_L16))
    I('s_lshl_b32 s53, s%d, 14' % S_W)
    I('s_add_u32 s53, s53, %d' % GB)
    I('v_add_u32 v%d, s53, v%d' % (V_GL, V_L16))
    I('v_and_b32 v25, 1, v20')
    I('v_lshlrev_b32 v25, 4, v25')
    I('v_mov_b32 v26, 0xffff')
    I('v_lshlrev_b32 v25, v25, v26')
    I('v_lshrrev_b32 v26, 5, v%d' % L)
    I('v_lshlrev_b32 v26, 2, v26')
    I('v_lshrrev_b32 v27, 1, v20')
    I('v_sub_u32 v26, v27, v26')
    for r in range(4):
        I('v_cmp_eq_u32 vcc, %d, v26' % r)
        I('v_cndmask_b32 v%d, 0, v25, vcc' % (16 + r))
    A_CA = 32
    stamp(a, cfg, 'i4')
    for f in range(15):
        I('v_lshl_or_b32 v%d, v%d, 16, v%d' % (f, f, f))
        for r in range(4):
            I('v_and_b32 v%d, v%d, v%d' % (28 + r, f, 16 + r))
        for r in range(4):
            I('v_accvgpr_write_b32 a%d, v%d' % (A_CA + 4 * f + r, 28 + r))
    stamp(a, cfg, 'i5')
    for hr in range(6, 9): row(hr)
    w1issue(9)
    stamp(a, cfg, 'pre')

    ACC = [0, 24]
    ring = [0]
    NR = 8
    VB = lambda pi, cg: 48 + pi * 3 + cg
    def bread(t, pxg, cg, pi):
        slot = ring[0] % NR; ring[0] += 1
        tt = t if t < 5 else t - 5
        I('ds_read_b128 a[%d:%d], v%d offset:%d' % (A_RING + 4 * slot, A_RING + 4 * slot + 3, VB(pi, cg), tt * ROWP + pxg * 6144), tag='cb')
        return slot
    seq = [(pxg, cg, pi) for pxg in range(2) for cg in range(3) for pi in range(5)]
    INV = 1.0 / 192
    def ln_finish(t):
        acc = ACC[t % 2]; buf = (t % 2) * 1024
        F = []
        F.append(lambda: I('ds_read_b128 v[76:79], v%d offset:%d' % (V_L16, buf)))
        F.append(lambda: I('v_add_f32 v76, v76, v77'))
        F.append(lambda: I('v_add_f32 v78, v78, v79'))
        F.append(lambda: I('v_add_f32 v76, v76, v78'))
        F.append(lambda: I('v_mov_b32 v77, v76'))
        F.append(lambda: I('v_permlane16_swap_b32 v76, v77'))
        F.append(lambda: I('v_mul_f32 v76, 0x%x, v76' % f2u(INV)))
        F.append(lambda: I('v_mul_f32 v78, v76, v76'))
        F.append(lambda: I('v_fma_f32 v77, v77, s59, -v78'))
        F.append(lambda: I('v_max_f32 v77, 0, v77'))
        F.append(lambda: I('v_add_f32 v77, 0x%x, v77' % f2u(1e-5)))
        F.append(lambda: I('v_rsq_f32 v77, v77'))
        F.append(lambda: I('v_mul_f32 v80, 0x%x, v77' % f2u(ALPHA)))
        F.append(lambda: I('v_mul_f32 v82, v76, v80'))
        F.append(lambda: I('v_mov_b32 v81, v80'))
        F.append(lambda: I('v_mov_b32 v83, v82'))
        F.append(lambda: I('v_permlane32_swap_b32 v80, v81'))
        F.append(lambda: I('v_permlane32_swap_b32 v82, v83'))
        for pxg in range(2):
            for cg in range(3):
                b = acc + (pxg * 3 + cg) * 4
                for i in range(4):
                    F.append(lambda b=b, i=i, pxg=pxg: I('v_fma_f32 v%d, v%d, v%d, -v%d' % (b + i, b + i, 80 + pxg, 82 + pxg)))
                F.append(lambda b=b: I('v_cvt_pk_bf16_f32 v%d, v%d, v%d' % (b, b, b + 1)))
                F.append(lambda b=b: I('v_cvt_pk_bf16_f32 v%d, v%d, v%d' % (b + 1, b + 2, b + 3)))
                tt = t if t < 5 else t - 5
                F.append(lambda b=b, tt=tt, cg=cg, pxg=pxg: I('ds_write_b64 v69, v[%d:%d] offset:%d' % (b, b + 1, tt * ROWP + cg * 1024 + pxg * 256), tag='yw'))
        return F
    def psum(t, pxg, cg):
        acc = ACC[t % 2]; b = acc + (pxg * 3 + cg) * 4
        sa, sb = 72 + 2 * pxg, 73 + 2 * pxg
        F = []
        for i in range(4):
            if cg == 0 and i == 0:
                F.append(lambda: I('v_add_f32 v%d, v%d, v%d' % (sa, b, b + 1)))
                F.append(lambda: I('v_mul_f32 v%d, v%d, v%d' % (sb, b, b)))
            else:
                if not (cg == 0 and i == 1):
                    F.append(lambda i=i: I('v_add_f32 v%d, v%d, v%d' % (sa, sa, b + i)))
                F.append(lambda i=i: I('v_fmac_f32 v%d, v%d, v%d' % (sb, b + i, b + i)))
        return F
    def stats_out(t):
        buf = (t % 2) * 1024
        I('v_permlane32_swap_b32 v72, v74')
        I('v_permlane32_swap_b32 v73, v75')
        I('v_add_f32 v72, v72, v74')
        I('v_add_f32 v73, v73, v75')
        I('v_permlane16_swap_b32 v72, v73')
        I('v_add_f32 v72, v72, v73')
        I('ds_write_b32 v70, v72 offset:%d' % buf, tag='st')
    I('s_mov_b32 s59, 0x%x' % f2u(INV))
    w1plan = {0: 12, 1: 3, 2: 3, 3: 27, 4: 3, 5: 3, 6: 99}
    permplan = {3: 12, 6: 12}
    PRE = 3
    for t in range(7):
        a.comment('conv row %d' % t)
        stamp(a, cfg, 'c%d' % t)
        if t == 5:
            for r in range(48, 63): I('v_add_u32 v%d, %d, v%d' % (r, 5 * ROWP, r))
        slots = []
        if t > 0:
            for k in range(PRE): slots.append(bread(t, *seq[k]))
        a.wait_both(vmtags=['row%d' % (t + 2), 'edge'] if t == 0 else ['row%d' % (t + 2)], lgtags=['st'])
        I('s_barrier')
        stamp(a, cfg, 'b%d' % t)
        fill = ln_finish(t - 1) if t > 0 else []
        if t == 6: fill.insert(18, lambda: I('v_add_u32 v69, %d, v69' % (5 * ROWP)))
        for _ in range(w1plan.get(t, 0)):
            if w1q: fill.append(w1q.pop(0))
        for _ in range(permplan.get(t, 0)): fill.append(perm1)
        while len(slots) < 6: slots.append(bread(t, *seq[len(slots)]))
        nfill = len(fill)
        per = max(1, math.ceil((nfill + 30) / 28.0))
        for k, (pxg, cg, pi) in enumerate(seq):
            d = ACC[t % 2] + (pxg * 3 + cg) * 4
            s_ = slots[k]
            c = '0' if pi == 0 else 'v[%d:%d]' % (d, d + 3)
            I('v_mfma_f32_16x16x32_bf16 v[%d:%d], a[%d:%d], a[%d:%d], %s' % (d, d + 3, A_CA + 4 * (pi * 3 + cg), A_CA + 4 * (pi * 3 + cg) + 3, A_RING + 4 * s_, A_RING + 4 * s_ + 3, c))
            if len(slots) < 30: slots.append(bread(t, *seq[len(slots)]))
            if pi == 2 and k >= 5:
                pp, pc, _ = seq[k - 5]
                fill += psum(t, pp, pc)
            for _ in range(per):
                if fill: fill.pop(0)()
        while fill: fill.pop(0)()
        for f in psum(t, 1, 2): f()
        stats_out(t)
    a.wait_lg('st')
    I('s_barrier')
    for f in ln_finish(6): f()
    while permq: perm1()
    a.wait_lg(n=0)
    I('s_barrier')
    stamp(a, cfg, 'pro')

def gen_dump_y(a):
    I = a.I
    I('s_mul_i32 s40, s2, 86016')
    I('s_add_u32 s40, s40, %d' % WS_DUMP)
    I('s_mul_i32 s41, s%d, 3072' % S_W)
    I('s_add_u32 s40, s40, s41')
    I('s_add_u32 s41, s41, %d' % HB)
    I('v_add_u32 v1, s41, v%d' % V_L16)
    for t in range(7):
        for j in range(3):
            I('ds_read_b128 v[4:7], v1 offset:%d' % (j * 1024))
            I('buffer_store_dwordx4 v[4:7], v%d, %s, s40 offen offset:%d' % (V_L16, srd(SRD_WS), j * 1024))
            a.wait_vm(n=0)
        I('v_add_u32 v1, %d, v1' % ROWP)
        I('s_add_u32 s40, s40, 12288')
    I('s_mul_i32 s40, s%d, 24576' % S_W)
    I('s_add_u32 s40, s40, %d' % (WS_DUMP + 0x1400000))
    I('s_cmp_lg_u32 s2, 0')
    I('s_cbranch_scc1 L_end')
    for k in range(24):
        I('buffer_store_dwordx4 v[%d:%d], v%d, %s, s40 offen' % (V_W10 + 4 * k, V_W10 + 4 * k + 3, V_L16, srd(SRD_WS)))
        I('s_add_u32 s40, s40, 1024')

def gen_helper(a, cfg):
    I = a.I
    a.sect = 'helper'
    a.forget()
    a.label('L_helper')
    L = V_LANE
    I('s_cmp_ge_u32 s2, %d' % (NMAIN + NH))
    I('s_cbranch_scc1 L_end')
    I('s_load_dwordx2 s[24:25], s[0:1], 24')
    I('s_load_dwordx2 s[44:45], s[0:1], 40')
    I('s_mov_b32 s26, %d' % (768 * 192 * 2)); I('s_mov_b32 s27, 0x20000')
    I('s_sub_u32 s40, s2, %d' % NMAIN)
    I('v_lshlrev_b32 v%d, 4, v%d' % (V_L16, L))
    if cfg.prefetch_code:
        I('s_getpc_b64 s[46:47]')
        a.label('L_pc')
        I('s_sub_u32 s46, s46, L_pc-%s_kernel' % NAME)
        I('s_subb_u32 s47, s47, 0')
        I('s_lshl_b32 s48, s%d, 10' % S_W)
        I('v_add_u32 v2, s48, v%d' % V_L16)
        I('s_mov_b32 s48, (L_code_end-%s_kernel)/4096' % NAME)
        a.label('L_pf')
        I('global_load_dwordx4 v[252:255], v2, s[46:47]')
        a.vmq = []
        I('v_add_u32 v2, 4096, v2')
        I('s_sub_u32 s48, s48, 1')
        I('s_cmp_lg_u32 s48, 0')
        I('s_cbranch_scc1 L_pf')
    I('s_waitcnt lgkmcnt(0)'); a.forget()
    I('s_cmp_ge_u32 s40, 24')
    I('s_cbranch_scc1 L_hb')
    I('s_mul_i32 s41, s40, 43'); I('s_lshr_b32 s41, s41, 8')
    I('s_mul_i32 s42, s41, 6'); I('s_sub_u32 s42, s40, s42')
    I('s_mul_i32 s43, s41, 192')
    I('s_lshr_b32 s46, s42, 1'); I('s_lshl_b32 s46, s46, 6'); I('s_add_u32 s43, s43, s46')
    I('s_and_b32 s46, s42, 1'); I('s_add_u32 s43, s43, s46')
    I('v_lshrrev_b32 v10, 5, v%d' % L)
    I('v_and_b32 v11, 31, v%d' % L)
    I('s_movk_i32 s46, 3072')
    I('v_lshlrev_b32 v12, 1, v11')
    I('v_mad_u32_u24 v12, v10, s46, v12')
    I('s_lshl_b32 s46, s%d, 4' % S_W)
    I('s_add_u32 s46, s46, s43')
    I('s_mul_i32 s46, s46, 384')
    for cb in range(6):
        for i4 in range(4):
            I('buffer_load_ushort v%d, v12, %s, s46 offen offset:%d' % (16 + cb * 4 + i4, srd(24), i4 * 768 + cb * 64))
    I('s_movk_i32 s47, %d' % (8 * 1536))
    I('v_lshlrev_b32 v13, 2, v11')
    I('v_mad_u32_u24 v13, v10, s47, v13')
    I('s_mul_i32 s47, s%d, %d' % (S_W, 48 * 1536))
    I('s_lshl_b32 s48, s43, 1')
    I('s_add_u32 s47, s47, s48')
    for k in range(3):
        for i in range(8):
            I('buffer_load_ushort v%d, v13, %s, s47 offen' % (40 + k * 8 + i, srd(SRD_W1)))
            I('s_add_u32 s47, s47, %d' % (1536 if i < 7 else 9 * 1536))
    I('s_mul_i32 s46, s41, 147456')
    I('s_lshl_b32 s48, s42, 12'); I('s_add_u32 s46, s46, s48')
    I('s_lshl_b32 s48, s%d, 10' % S_W); I('s_add_u32 s46, s46, s48')
    I('s_add_u32 s46, s46, %d' % WS_W2)
    for cb in range(6):
        for i4 in range(4): I('v_lshlrev_b32 v%d, 16, v%d' % (16 + cb * 4 + i4, 16 + cb * 4 + i4))
        I('buffer_store_dwordx4 v[%d:%d], v%d, %s, s46 offen sc1' % (16 + cb * 4, 19 + cb * 4, V_L16, srd(SRD_WS)))
        I('s_add_u32 s46, s46, 24576')
    I('s_mul_i32 s46, s40, 12288')
    I('s_mul_i32 s48, s%d, 3072' % S_W); I('s_add_u32 s46, s46, s48')
    for k in range(3):
        for r in range(4):
            I('v_lshl_or_b32 v%d, v%d, 16, v%d' % (64 + k * 4 + r, 40 + k * 8 + 2 * r + 1, 40 + k * 8 + 2 * r))
        I('buffer_store_dwordx4 v[%d:%d], v%d, %s, s46 offen offset:%d sc1' % (64 + k * 4, 67 + k * 4, V_L16, srd(SRD_WS), WS_W1 + k * 1024))
    I('s_branch L_hdone')
    a.forget()
    a.label('L_hb')
    I('s_cmp_ge_u32 s40, 28')
    I('s_cbranch_scc1 L_hz')
    I('s_sub_u32 s41, s40, 24')
    I('s_mul_i32 s42, s41, 192'); I('s_mul_i32 s43, s%d, 48' % S_W); I('s_add_u32 s42, s42, s43')
    I('s_lshl_b32 s43, s42, 1')
    I('s_add_u32 s44, s44, s43'); I('s_addc_u32 s45, s45, 0')
    I('s_load_dwordx8 s[72:79], s[44:45], 0')
    I('s_load_dwordx8 s[80:87], s[44:45], 32')
    I('s_load_dwordx8 s[88:95], s[44:45], 64')
    I('s_mul_i32 s42, s42, 384')
    I('v_lshlrev_b32 v12, 3, v%d' % L)
    I('v_cmp_gt_u32 vcc, 48, v%d' % L)
    I('v_mov_b32 v13, 0x%x' % BIG)
    I('v_cndmask_b32 v12, v13, v12, vcc')
    for r in range(48):
        I('buffer_load_dwordx2 v[%d:%d], v12, %s, s42 offen offset:%d' % (104 + 2 * r, 105 + 2 * r, srd(24), (r % 8) * 384))
        if r % 8 == 7: I('s_add_u32 s42, s42, 3072')
    for i in range(4): I('v_mov_b32 v%d, 0' % (4 + i))
    for r in range(48):
        sreg = 72 + r // 2
        if r % 2 == 0: I('s_lshl_b32 s46, s%d, 16' % sreg)
        else: I('s_and_b32 s46, s%d, 0xffff0000' % sreg)
        for d in range(2):
            I('v_lshlrev_b32 v8, 16, v%d' % (104 + 2 * r + d))
            I('v_and_b32 v9, 0xffff0000, v%d' % (104 + 2 * r + d))
            I('v_fmac_f32 v%d, s46, v8' % (4 + 2 * d))
            I('v_fmac_f32 v%d, s46, v9' % (5 + 2 * d))
    I('s_lshl_b32 s46, s%d, 10' % S_W)
    I('v_add_u32 v10, s46, v%d' % V_L16)
    I('ds_write_b128 v10, v[4:7]')
    a.wait_lg(n=0)
    I('s_barrier')
    for k in range(4): I('ds_read_b128 v[%d:%d], v%d offset:%d' % (16 + 4 * k, 19 + 4 * k, V_L16, k * 1024))
    for k in range(1, 4):
        for i in range(4): I('v_add_f32 v%d, v%d, v%d' % (16 + i, 16 + i, 16 + 4 * k + i))
    I('v_cndmask_b32 v12, v13, v%d, vcc' % V_L16)
    I('s_mul_i32 s46, s41, 768')
    I('s_add_u32 s46, s46, %d' % WS_BIAS)
    I('s_cmp_lg_u32 s%d, 0' % S_W)
    I('s_cbranch_scc1 L_hdone')
    I('buffer_store_dwordx4 v[16:19], v12, %s, s46 offen sc1' % srd(SRD_WS))
    I('s_branch L_hdone')
    a.forget()
    a.label('L_hz')
    nz = cfg.R * 3072 + 4096
    assert nz % 4096 == 0
    for i in range(4): I('v_mov_b32 v%d, 0' % (4 + i))
    I('s_lshl_b32 s46, s%d, 10' % S_W)
    I('s_add_u32 s46, s46, %d' % WS_SUM)
    for k in range(nz // 4096):
        I('buffer_store_dwordx4 v[4:7], v%d, %s, s46 offen sc1' % (V_L16, srd(SRD_WS)))
        I('s_add_u32 s46, s46, 4096')
    a.label('L_hdone')
    I('s_waitcnt vmcnt(0) lgkmcnt(0)'); a.forget()
    I('s_barrier')
    I('s_cmp_lg_u32 s%d, 0' % S_W)
    I('s_cbranch_scc1 L_end')
    I('v_mov_b32 v4, 1')
    I('v_mov_b32 v5, 0')
    I('s_mov_b64 exec, 1')
    I('buffer_atomic_add v4, v5, %s, 0 offen sc1' % srd(SRD_DBG))
    if cfg.stamps:
        I('s_waitcnt vmcnt(0)'); a.vmq = []
        I('s_memrealtime s[100:101]')
        I('s_waitcnt lgkmcnt(0)'); a.smem_pending = set()
        I('s_lshl_b32 s40, s2, 8'); I('s_add_u32 s40, s40, %d' % WS_STAMP)
        I('v_mov_b32 v2, s98'); I('v_mov_b32 v3, s100')
        I('buffer_store_dwordx2 v[2:3], v5, %s, s40 offen' % srd(SRD_WS))
    a.label('L_end')
    I('s_endpgm')

def gen_stamps_out(a, cfg, n):
    I = a.I
    I('s_memrealtime s[100:101]')
    I('s_waitcnt lgkmcnt(0)'); a.smem_pending = set()
    I('s_lshl_b32 s40, s2, 2'); I('s_add_u32 s40, s40, s%d' % S_W); I('s_lshl_b32 s40, s40, 6')
    I('s_add_u32 s40, s40, %d' % WS_STAMP)
    I('v_mov_b32 v1, 0')
    I('s_mov_b64 exec, 1')
    for k in list(range(n)) + [9, 10]:
        I('v_mov_b32 v2, s%d' % (S_STAMP + 2 * k))
        I('buffer_store_dword v2, v1, %s, s40 offen offset:%d' % (srd(SRD_WS), 4 * k))
    I('s_mov_b64 exec, -1')

def build(cfg):
    a = Asm()
    if cfg.stop == 'entry': a.I('s_endpgm')
    gen_entry(a, cfg)
    gen_prologue(a, cfg)
    if cfg.stop == 'pro':
        if cfg.stamps: gen_stamps_out(a, cfg, len(cfg.stamps))
        gen_dump_y(a)
        a.I('s_branch L_end')
    else:
        import gen2
        gen2.gen_main(a, cfg)
    gen_helper(a, cfg)
    head = open('cdna_kernels/%s.s.ref' % NAME).read().split('; Override')[0] if False else ''
    src = '; generated by gen/gen.py\n'
    src += '; @launch grid=(%d,1,1) block=(256,1,1) lds=%d\n' % (NMAIN + NH, LDS_BYTES)
    src += '.amdgcn_target "amdgcn-amd-amdhsa--gfx950"\n.text\n.globl %s_kernel\n.p2align 8\n.type %s_kernel,@function\n%s_kernel:\n' % (NAME, NAME, NAME)
    src += a.text()
    src += 'L_code_end:\n'
    src += '''.section .rodata,"a"
.p2align 6
.amdhsa_kernel %s_kernel
  .amdhsa_next_free_vgpr 512
  .amdhsa_next_free_sgpr 102
  .amdhsa_accum_offset 256
  .amdhsa_group_segment_fixed_size 0
  .amdhsa_kernarg_size 72
  .amdhsa_user_sgpr_count 2
  .amdhsa_user_sgpr_kernarg_segment_ptr 1
  .amdhsa_system_sgpr_workgroup_id_x 1
.end_amdhsa_kernel
''' % NAME
    return src, a

if __name__ == '__main__':
    sys.modules['gen'] = sys.modules['__main__']
    cfg = Cfg()
    out = sys.argv[1] if len(sys.argv) > 1 else 'cdna_kernels/%s.s' % NAME
    for kv in sys.argv[2:]:
        k, v = kv.split('=')
        setattr(cfg, k, eval(v))
    if cfg.stamps is True: cfg.stamps = ['start', 'pre', 'pro', 'p1', 'sync', 's', 'end']
    if isinstance(cfg.stamps, str): cfg.stamps = cfg.stamps.split(',')
    src, a = build(cfg)
    open(out, 'w').write(src)
    print('instrs', a.count(), 'bytes', len(src), 'nops', dict(a.nops), 'waits', dict(a.nwaits))
```

```python
from asmlib import *
import g3 as G
from g3 import *

NS = 42
X = lambda n: 16 * (n % 3)
Z = lambda n: 48 + 16 * (n % 2)
SQ = lambda b: 80 + 16 * b
V_T = 112
V_DUM = 244
def dec(n): return n // 14, (n % 14) // 2, n & 1
def nof(eb, t): return 14 * (eb // 2) + 2 * t + (eb & 1)
AL = [3, 5, 7, 9, 11, 13] + list(range(14, 22))
def home1(n):
    if n <= 12 and n % 2 == 0: return ('l', n // 2)
    if n == 1: return ('l', 7)
    if n in AL: return ('a', 144 + 8 * AL.index(n))
    if n <= 37: return ('v', 120 + 8 * (n - 22))
    if n == 38: return ('v', V_T)
    return ('v', X(n))
def home2(n):
    if n == 1: return ('a', 136)
    if n >= 34: return ('a', 72 + 8 * (n - 34))
    return home1(n)

FA, FB = 0, 48
V_RAW, V_TMP, V_S, V_O = 96, 216, 232, 244
V_EW, V_ER, V_OUT, V_XL, V_SA, V_OUT2 = 249, 250, 251, 253, 254, 255
A_ACC = [0, 16]
A_BIAS, A_X, A_ID, A_GL = 32, 48, 60, 64
KORD = [11, 6, 7, 8, 9, 10, 4, 5, 2, 3, 0, 1]
RES = 6
def raw0_reg(ks, hr):
    if ks in (6, 7, 8): return V_RAW + (ks - 6) * 8 + 4 * hr
    if ks in (9, 10): return V_TMP + (ks - 9) * 8 + 4 * hr
    if ks == 11: return FA + 40 + 4 * hr
    return FB + ks * 8 + 4 * hr

def gen_main(a, cfg, tail):
    I = a.I
    ws = srd(SRD_WS)
    a.sect = 'p1'
    CNT = float(NMAIN // cfg.R)
    def yread(t, ks):
        base, off = (V_YA, t * ROWP) if t < 4 else (V_YB, (t - 4) * ROWP)
        I('ds_read_b128 %s, v%d offset:%d' % (ar(4 * ks, 4), base, off + ks * 1024), tag='y%d' % ks)
    def w1f_load(eb, ks):
        if ks % 4 == 0: I('s_add_u32 s40, s%d, %d' % (S_W1F, WS_W1 + eb * 12288 + ks * 1024))
        I('buffer_load_dwordx4 %s, v%d, %s, s40 offen offset:%d sc1' % (ar(A_W1 + 48 * (eb & 1) + 4 * ks, 4), V_L16, ws, (ks % 4) * 1024), tag='w1f')
    vm = {}
    def dummy(text):
        I(text, tag='warm'); a.vmq[-1] = ('warm', set())
    vm.setdefault(cfg.flag_n - 2, []).append(lambda: I('buffer_load_dword v%d, off, %s, 0 sc1' % (V_FLAG, srd(SRD_DBG)), tag='flag'))
    if cfg.warm:
        def warm(base, size, per, k):
            def f():
                if k == 0:
                    I('s_lshr_b32 s42, s2, 3'); I('s_lshl_b32 s42, s42, 2'); I('s_add_u32 s42, s42, s%d' % S_W)
                    I('s_mul_i32 s42, s42, %d' % (per * 1024)); I('s_min_u32 s42, s42, %d' % (size - per * 1024))
                    I('s_add_u32 s42, s42, %d' % base)
                if k == 4: I('s_add_u32 s42, s42, 4096')
                dummy('buffer_load_dwordx4 %s, v%d, %s, s42 offen offset:%d sc1' % (vr(V_DUM, 4), V_L16, ws, (k % 4) * 1024))
            return f
        for k in range(3): vm.setdefault(cfg.flag_n + 1 + k // 2, []).append(warm(WS_W1, 24 * 12288, 3, k))
        for k in range(6): vm.setdefault(16 + k // 2 * 2, []).append(warm(WS_W2, 4 * 147456, 6, k))
    if cfg.xwarm:
        def xw(t, j):
            def f():
                if j == 0:
                    I('s_mul_i32 s43, s%d, 3072' % S_W); I('s_add_u32 s43, s43, s%d' % (S_ROW + t))
                dummy('buffer_load_dwordx4 %s, v%d, %s, s43 offen offset:%d' % (vr(V_DUM, 4), V_L16, srd(SRD_X), j * 1024))
            return f
        steps = [n for n in range(cfg.xwarm, 26) if n % 14 not in (12, 13) and n not in vm]
        for i in range(21): vm.setdefault(steps[i % len(steps)], []).append(xw(i // 3, i % 3))

    def sq_reduce(eb):
        S = SQ(eb & 1)
        for k in range(8): I('v_permlane16_swap_b32 v%d, v%d' % (S + k, S + k + 8))
        for k in range(0, 8, 2): I('v_pk_add_f32 %s, %s, %s' % (vr(S + k, 2), vr(S + k, 2), vr(S + k + 8, 2)))
        for k in range(4): I('v_add_f32_dpp v%d, v%d, v%d row_ror:8 row_mask:0xf bank_mask:0x3' % (S + k, S + k, S + k))
        for k in range(4): I('v_add_f32_dpp v%d, v%d, v%d row_ror:8 row_mask:0xf bank_mask:0xc' % (S + k, S + k + 4, S + k + 4))
        for k in range(2): I('v_add_f32_dpp v%d, v%d, v%d row_half_mirror row_mask:0xf bank_mask:0x5' % (S + k, S + k, S + k))
        for k in range(2): I('v_add_f32_dpp v%d, v%d, v%d row_half_mirror row_mask:0xf bank_mask:0xa' % (S + k, S + k + 2, S + k + 2))
        I('v_cndmask_b32 v%d, v%d, v%d, s[6:7]' % (S + 2, S, S + 1))
        I('v_cndmask_b32 v%d, v%d, v%d, s[6:7]' % (S + 3, S + 1, S))
        I('v_add_f32_dpp v%d, v%d, v%d quad_perm:[1,0,3,2] row_mask:0xf bank_mask:0xf' % (S + 2, S + 3, S + 2))
        I('v_add_f32_dpp v%d, v%d, v%d quad_perm:[2,3,0,1] row_mask:0xf bank_mask:0xf' % (S + 4, S + 2, S + 2))
        I('v_cndmask_b32 v%d, v%d, 1.0, s[64:65]' % (S + 4, S + 4))
        I('buffer_atomic_add_f32 v%d, v%d, %s, s%d offen offset:%d' % (S + 4, V_AT, ws, S_AT, eb * 256), tag='atom')

    def cvt(n):
        k, r = home1(n)
        d = r if k == 'v' else V_T
        for j in range(8): I('v_cvt_pk_bf16_f32 v%d, v%d, v%d' % (d + j, X(n) + 2 * j, X(n) + 2 * j + 1))
    def moves(n):
        if n < 0 or n >= NS: return [], []
        k, r = home1(n)
        if k == 'a': return [(lambda j=j: I('v_accvgpr_write_b32 a%d, v%d' % (r + j, V_T + j))) for j in range(8)], []
        if k == 'l': return [], [(lambda f=f: I('ds_write_b128 v%d, %s offset:%d' % (V_GL, vr(V_T + 4 * f, 4), r * 2048 + f * 1024), tag='gw')) for f in range(2)]
        return [], []

    tail = list(tail)
    def tcost(f):
        return getattr(f, 'cost', 4)
    if tail:
        tail.pop(0)(); tail.pop(0)()
    B = cfg.budget
    for n in range(NS + 2):
        P, t, b = dec(n)
        a.comment('W %d' % n); stamp(a, cfg, 'W%d' % n)
        TR = []
        if 0 <= n - 1 < NS: TR += [(lambda i=i: I('v_exp_f32 v%d, v%d' % (Z(n - 1) + i, Z(n - 1) + i))) for i in range(16)]
        if 0 <= n - 2 < NS: TR += [(lambda i=i: I('v_rcp_f32 v%d, v%d' % (Z(n - 2) + i, Z(n - 2) + i))) for i in range(16)]
        acw, dsw = moves(n - 3)
        vl = list(vm.get(n, []))
        if n < NS:
            reload = (n % 14 in (12, 13)) and P < 2
            pref = b == 1 and n + 1 < NS
            tn = dec(n + 1)[1] if pref else None
            for ks in range(12):
                I('v_mfma_f32_32x32x16_bf16 %s, %s, %s, %s' % (vr(X(n), 16), ar(A_W1 + 48 * b + 4 * ks, 4), ar(4 * ks, 4), '0' if ks == 0 else vr(X(n), 16)))
                c = 0
                if n == 2 and ks == 0 and cfg.merge:
                    assert not tail
                    I('s_barrier')
                if pref:
                    if ks >= 1: yread(tn, ks - 1); c += 4
                    if ks == 11: yread(tn, 11); c += 4
                if reload:
                    if ks >= 1: w1f_load(2 * P + 2 + b, ks - 1); c += 8
                    if ks == 11: w1f_load(2 * P + 2 + b, 11); c += 8
                if ks in (2, 7) and dsw: dsw.pop(0)(); c += 20
                if ks in (4, 9, 6) and vl: vl.pop(0)(); c += 8
                lim = B if ks < 11 else 10 ** 6
                while tail and (n > 0 or ks >= 2) and c + tcost(tail[0]) <= lim and (n == 0 or len(TR) * 8 <= (11 - ks) * 8 + 24 or ks == 11 or ks % 2 == 0):
                    c += tcost(tail[0]); tail.pop(0)()
                    if n == 0 and ks == 11: break
                while TR and c + 8 <= lim and (ks == 11 or len(TR) > cfg.keep):
                    TR.pop(0)(); c += 8
                    if ks == 11 and acw: acw.pop(0)()
                while acw and c + 4 <= lim: acw.pop(0)(); c += 4
            assert not vl and not dsw
            if n == 1:
                while tail: tail.pop(0)()
                a.wait_lg('yw')
        for f in TR + acw + dsw: f()
        a.comment('P %d' % n); stamp(a, cfg, 'P%d' % n)
        if n == cfg.flag_n:
            a.wait_vm('flag')
            I('v_readfirstlane_b32 s4, v%d' % V_FLAG)
            I('s_cmp_lg_u32 s4, %d' % NSIG)
            I('s_cbranch_scc1 L_slow1')
            a.label('L_back1')
        if 0 <= n - 1 < NS:
            for j in range(0, 16, 2): I('v_pk_add_f32 %s, %s, s[%d:%d]' % (vr(Z(n - 1) + j, 2), vr(Z(n - 1) + j, 2), S_ONE, S_ONE + 1))
        m = n - 2
        if 0 <= m < NS:
            S = SQ(m & 1)
            for j in range(0, 16, 2): I('v_pk_mul_f32 %s, %s, %s' % (vr(X(m) + j, 2), vr(X(m) + j, 2), vr(Z(m) + j, 2)))
            for j in range(0, 16, 2):
                if dec(m)[1] == 0: I('v_pk_mul_f32 %s, %s, %s' % (vr(S + j, 2), vr(X(m) + j, 2), vr(X(m) + j, 2)))
                else: I('v_pk_fma_f32 %s, %s, %s, %s' % (vr(S + j, 2), vr(X(m) + j, 2), vr(X(m) + j, 2), vr(S + j, 2)))
            if m >= NS - 2: sq_reduce(4 + (m & 1))
            if m < NS - 2: cvt(m)
        if n < NS:
            for j in range(0, 16, 2): I('v_pk_fma_f32 %s, %s, %s, s[%d:%d]' % (vr(Z(n) + j, 2), vr(X(n) + j, 2), vr(X(n) + j, 2), S_AP, S_AP + 1))
            for j in range(0, 16, 2): I('v_pk_mul_f32 %s, %s, %s neg_lo:[1,0] neg_hi:[1,0]' % (vr(Z(n) + j, 2), vr(X(n) + j, 2), vr(Z(n) + j, 2)))
        if 0 <= m < NS - 2 and dec(m)[1] == 6: sq_reduce(2 * dec(m)[0] + (m & 1))
    stamp(a, cfg, 'p1')

    a.sect = 'sync'
    if cfg.stop == 'p1':
        I('s_waitcnt vmcnt(0)')
        if cfg.stamps: gen_stamps_out(a, cfg, len(cfg.stamps))
        I('s_endpgm')
    def raw_pair(cb, ks):
        I('s_add_u32 s41, s%d, %d' % (S_W2, cb * 24576 + ks * 2048))
        for hr in range(2):
            I('buffer_load_dwordx4 %s, v%d, %s, s41 offen offset:%d sc1' % (vr(raw0_reg(ks, hr), 4), V_L16, ws, hr * 1024), tag='raw0')
    def mv(n):
        s_ = home1(n)[1]; d = home2(n)[1]
        for j in range(8): I('v_accvgpr_write_b32 a%d, v%d' % (d + j, s_ + j))
    for ks in (6, 7, 2, 3, 0, 1): raw_pair(0, ks)
    cvt(40); cvt(41)
    for n in (39, 40, 41): mv(n)
    E, LT, GM, TT = 0, 16, 24, 28
    VL, VH, VP, VLO = TT, TT + 1, TT + 2, TT + 3
    I('s_mul_i32 s44, s%d, 1536' % S_W)
    I('s_add_u32 s44, s44, %d' % WS_SUM)
    I('v_lshrrev_b32 v%d, 4, v%d' % (VL, V_L16))
    I('v_lshrrev_b32 v%d, 5, v%d' % (VH, VL))
    I('v_and_b32 v%d, 31, v%d' % (VP, VL))
    I('s_movk_i32 s45, 6144')
    I('v_lshlrev_b32 v%d, 4, v%d' % (VLO, VP))
    I('v_mad_u32_u24 v%d, v%d, s45, v%d' % (VLO, VH, VLO))
    I('s_add_u32 s46, s44, %d' % (2 * 6144))
    assert cfg.R == 4
    def late():
        I('buffer_load_dwordx4 %s, v%d, %s, s44 offen offset:1024 sc1' % (vr(LT, 4), VLO, ws), tag='late')
        I('buffer_load_dwordx4 %s, v%d, %s, s46 offen offset:1024 sc1' % (vr(LT + 4, 4), VLO, ws), tag='late')
    def early():
        for r in range(cfg.R):
            I('s_add_u32 s47, s44, %d' % (r * 6144))
            I('buffer_load_dwordx4 %s, v%d, %s, s47 offen sc1' % (vr(E + 4 * r, 4), V_L16, ws), tag='early')
    early()
    I('v_bfe_u32 v%d, v%d, 4, 1' % (TT + 4, VL))
    I('v_lshlrev_b32 v%d, 5, v%d' % (TT + 4, TT + 4))
    I('v_and_b32 v%d, 7, v%d' % (TT + 5, VL))
    I('v_lshl_add_u32 v%d, v%d, 2, v%d' % (TT + 4, TT + 5, TT + 4))
    I('v_bfe_u32 v%d, v%d, 3, 1' % (TT + 5, VL))
    I('v_lshl_add_u32 v%d, v%d, 6, v%d' % (TT + 4, TT + 5, TT + 4))
    I('v_lshl_add_u32 v%d, v%d, 7, v%d' % (TT + 5, VH, TT + 4))
    I('s_mul_i32 s45, s%d, 384' % S_W)
    I('buffer_load_dword v%d, v%d, %s, s45 offen' % (GM, TT + 5, srd(SRD_GAM)), tag='gam')
    I('buffer_load_dword v%d, v%d, %s, s45 offen offset:256' % (GM + 2, TT + 4, srd(SRD_GAM)), tag='gam')
    I('v_cmp_gt_u32 vcc, 48, v%d' % VL)
    I('v_mov_b32 v%d, 0x%x' % (TT + 6, BIG))
    I('v_cndmask_b32 v%d, v%d, v%d, vcc' % (TT + 6, TT + 6, V_L16))
    I('s_mul_i32 s45, s%d, 768' % S_W)
    I('s_add_u32 s45, s45, %d' % WS_BIAS)
    I('buffer_load_dwordx4 %s, v%d, %s, s45 offen sc1' % (vr(TT + 8, 4), TT + 6, ws), tag='bias')
    raw_pair(0, 11)
    I('s_movk_i32 s42, 384')
    I('s_lshl_b32 s43, s%d, 4' % S_W)
    I('v_mul_u32_u24 v%d, s42, v%d' % (V_XL, VP))
    I('v_lshlrev_b32 v%d, 31, v%d' % (TT + 6, VH))
    I('v_add3_u32 v%d, v%d, s43, v%d' % (V_XL, V_XL, TT + 6))
    def xload(j):
        if j >= 42: return
        cb, t = divmod(j, 7)
        I('buffer_load_dwordx4 %s, v%d, %s, s%d offen offset:%d%s' % (ar(A_X + 4 * (j % 3), 4), V_XL, srd(SRD_X), S_ROW + t, cb * 64, cfg.x2fl), tag='x%d' % j)
    xload(0); xload(1)
    for ks in (4, 5): raw_pair(0, ks)
    I('ds_read_b128 %s, v%d offset:%d' % (ar(136, 4), V_GL, 7 * 2048), tag='g1')
    I('ds_read_b128 %s, v%d offset:%d' % (ar(140, 4), V_GL, 7 * 2048 + 1024), tag='g1')
    mv(38); raw_pair(0, 8)
    mv(34); raw_pair(0, 9)
    mv(35); raw_pair(0, 10)
    late()
    mv(36); mv(37)
    I('s_mul_i32 s47, s%d, %d' % (S_W, EXW))
    I('s_add_u32 s47, s47, %d' % EXB)
    I('s_movk_i32 s48, 544')
    I('v_mul_u32_u24 v%d, s48, v%d' % (V_EW, VH))
    I('v_lshl_add_u32 v%d, v%d, 4, v%d' % (V_EW, VP, V_EW))
    I('v_add_u32 v%d, s47, v%d' % (V_EW, V_EW))
    I('v_bfe_u32 v%d, v%d, 2, 3' % (TT + 4, VL))
    I('s_lshl_b32 s47, s%d, 3' % S_W)
    I('v_add_u32 v%d, s47, v%d' % (TT + 4, TT + 4))
    I('v_and_b32 v%d, 3, v%d' % (TT + 5, VL))
    I('v_lshl_add_u32 v%d, v%d, 1, v%d' % (TT + 6, TT + 5, VH))
    I('v_mul_u32_u24 v%d, s48, v%d' % (V_ER, TT + 6))
    I('v_lshl_add_u32 v%d, v%d, 4, v%d' % (V_ER, TT + 4, V_ER))
    I('v_add_u32 v%d, %d, v%d' % (V_ER, EXB, V_ER))
    I('v_mul_u32_u24 v%d, s42, v%d' % (TT + 4, TT + 4))
    I('v_lshl_add_u32 v%d, v%d, 4, v%d' % (TT + 4, TT + 5, TT + 4))
    I('s_mov_b32 s47, %d' % (224 * 384))
    I('v_mad_u32_u24 v%d, v%d, s47, v%d' % (V_OUT, VH, TT + 4))
    I('s_mov_b32 s47, %d' % (6 * 224 * 384 - 64))
    I('v_mul_u32_u24 v%d, s47, v%d' % (TT + 5, VH))
    I('v_sub_u32 v%d, v%d, v%d' % (TT + 4, TT + 4, TT + 5))
    I('v_add_u32 v%d, %d, v%d' % (V_OUT2, 6 * 224 * 384, TT + 4))
    I('s_lshl_b32 s47, s%d, 10' % S_W)
    I('s_add_u32 s47, s47, %d' % STB)
    I('v_lshlrev_b32 v%d, 4, v%d' % (V_SA, VH))
    I('v_add_u32 v%d, s47, v%d' % (V_SA, V_SA))
    VSW, VSL = TT + 4, TT + 5
    I('v_lshlrev_b32 v%d, 3, v%d' % (VSW, VL))
    I('v_add_u32 v%d, s47, v%d' % (VSW, VSW))
    I('v_lshlrev_b32 v%d, 3, v%d' % (VSL, VP))
    I('v_add_u32 v%d, s47, v%d' % (VSL, VSL))
    I('v_add_u32 v%d, s47, v%d' % (TT + 6, V_L16))
    I('s_lshl_b32 s47, s%d, 3' % S_W)
    I('v_subrev_u32 v%d, s47, v%d' % (TT + 7, VL))
    I('v_lshrrev_b32 v%d, 1, v%d' % (TT + 7, TT + 7))
    I('v_and_b32 v%d, 1, v%d' % (VP, VL))
    I('v_lshlrev_b32 v%d, 4, v%d' % (VP, VP))
    I('v_mov_b32 v%d, 0x3f80' % VH)
    I('v_lshlrev_b32 v%d, v%d, v%d' % (VP, VP, VH))
    for d in range(4):
        I('v_cmp_eq_u32 vcc, %d, v%d' % (d, TT + 7))
        I('v_cndmask_b32 v%d, 0, v%d, vcc' % (VH, VP))
        I('v_accvgpr_write_b32 a%d, v%d' % (A_ID + d, VH))
    I('s_barrier')
    I('ds_write_b128 v%d, %s offset:4096' % (TT + 6, vr(TT + 8, 4)), tag='bw')
    C_EPS, C_IA2, C_IA, C_MW = TT + 6, 48, TT + 7, TT + 8
    I('s_mov_b32 s48, 0x%x' % f2u(1.0 / (ALPHA * ALPHA)))
    I('s_mov_b32 s49, 0x%x' % f2u(CNT))
    I('v_mov_b32 v%d, 0x%x' % (VH, f2u(1e-6)))
    I('v_mov_b32 v%d, 0x%x' % (VP, f2u(1.0 / ALPHA)))
    I('s_lshl_b32 s47, s%d, 2' % S_W)
    I('v_mov_b32 v%d, s47' % VL)
    for k in (0, 2):
        I('v_and_b32 v%d, 0xffff0000, v%d' % (GM + k + 1, GM + k))
        I('v_lshlrev_b32 v%d, 16, v%d' % (GM + k, GM + k))
    a.wait_lg('bw')
    for g in range(4): I('ds_read_b128 %s, v%d offset:%d' % (ar(A_BIAS + 4 * g, 4), V_SA, 4096 + g * 32), tag='bias')
    def gread(t, f):
        I('ds_read_b128 %s, v%d offset:%d' % (ar(A_GL + 4 * f, 4), V_GL, t * 2048 + f * 1024), tag='gl')
    gread(0, 0); gread(0, 1)
    a.wait_vm('early')
    a.label('L_early')
    T0 = TT + 8
    I('v_min3_f32 v%d, v%d, v%d, v%d' % (T0, E + 1, E + 3, E + 5))
    I('v_min3_f32 v%d, v%d, v%d, v%d' % (T0 + 1, E + 7, E + 9, E + 11))
    I('v_min3_f32 v%d, v%d, v%d, v%d' % (T0, T0, E + 13, E + 15))
    I('v_min_f32 v%d, v%d, v%d' % (T0, T0, T0 + 1))
    I('v_cmp_neq_f32 vcc, s49, v%d' % T0)
    I('s_cbranch_vccnz L_slow2')
    a.label('L_back2')
    for k in (0, 2):
        I('v_add_f32 v%d, v%d, v%d' % (E + k, E + k, E + 4 + k))
        I('v_add_f32 v%d, v%d, v%d' % (E + 8 + k, E + 8 + k, E + 12 + k))
    for k in (0, 2): I('v_add_f32 v%d, v%d, v%d' % (E + k, E + k, E + 8 + k))
    for k in (0, 2): I('v_fma_f32 v%d, v%d, s48, v%d' % (E + k, E + k, VH))
    for k in (0, 2): I('v_sqrt_f32 v%d, v%d' % (E + k, E + k))
    I('v_add_f32 v%d, v%d, v%d' % (E + 4, E, E + 2))
    I('v_mul_f32 v%d, v%d, v%d' % (GM, GM, E))
    I('v_mul_f32 v%d, v%d, v%d' % (GM + 1, GM + 1, E + 2))
    I('s_mov_b32 s4, %d' % SPIN_MAX)
    stamp(a, cfg, 'sy0')
    I('s_waitcnt vmcnt(0) lgkmcnt(0)'); a.forget()
    I('s_branch L_chk')
    a.label('L_poll')
    late()
    I('s_waitcnt vmcnt(0)'); a.forget()
    a.label('L_chk')
    I('v_min3_f32 v%d, v%d, v%d, v%d' % (T0, LT + 1, LT + 3, LT + 5))
    I('v_min_f32 v%d, v%d, v%d' % (T0, T0, LT + 7))
    I('v_cmp_neq_f32 vcc, s49, v%d' % T0)
    I('s_sub_u32 s4, s4, 1')
    I('s_cbranch_scc1 L_polled')
    I('s_cbranch_vccnz L_poll')
    a.label('L_polled')
    stamp(a, cfg, 'sync')
    I('v_add_f32 v%d, v%d, v%d' % (LT, LT, LT + 4))
    I('v_add_f32 v%d, v%d, v%d' % (LT + 2, LT + 2, LT + 6))
    I('v_mov_b32 v%d, v%d' % (LT + 1, LT))
    I('v_mov_b32 v%d, v%d' % (LT + 3, LT + 2))
    I('v_permlane32_swap_b32 v%d, v%d' % (LT, LT + 1))
    I('v_permlane32_swap_b32 v%d, v%d' % (LT + 2, LT + 3))
    I('v_add_f32 v%d, v%d, v%d' % (LT, LT, LT + 1))
    I('v_add_f32 v%d, v%d, v%d' % (LT + 2, LT + 2, LT + 3))
    for k in (0, 2): I('v_fma_f32 v%d, v%d, s48, v%d' % (LT + k, LT + k, VH))
    for k in (0, 2): I('v_sqrt_f32 v%d, v%d' % (LT + k, LT + k))
    M_ = E + 4
    I('v_fma_f32 v%d, v%d, 0.5, v%d' % (M_, LT, M_))
    I('v_fma_f32 v%d, v%d, 0.5, v%d' % (M_, LT + 2, M_))
    I('v_mul_f32 v%d, v%d, v%d' % (GM + 2, GM + 2, LT))
    I('v_add_f32_dpp v%d, v%d, v%d quad_perm:[1,0,3,2] row_mask:0xf bank_mask:0xf' % (M_, M_, M_))
    I('v_mul_f32 v%d, v%d, v%d' % (GM + 3, GM + 3, LT + 2))
    I('v_mov_b32 v%d, 0' % (E + 6))
    I('v_add_f32_dpp v%d, v%d, v%d quad_perm:[2,3,0,1] row_mask:0xf bank_mask:0xf' % (M_, M_, M_))
    I('v_add_f32_dpp v%d, v%d, v%d row_half_mirror row_mask:0xf bank_mask:0xf' % (M_, M_, M_))
    I('v_add_f32_dpp v%d, v%d, v%d row_ror:8 row_mask:0xf bank_mask:0xf' % (M_, M_, M_))
    I('v_mov_b32 v%d, v%d' % (M_ + 1, M_))
    I('v_permlane16_swap_b32 v%d, v%d' % (M_, M_ + 1))
    I('v_add_f32 v%d, v%d, v%d' % (M_, M_, M_ + 1))
    I('v_mov_b32 v%d, v%d' % (M_ + 1, M_))
    I('v_permlane32_swap_b32 v%d, v%d' % (M_, M_ + 1))
    I('v_add_f32 v%d, v%d, v%d' % (M_, M_, M_ + 1))
    I('ds_write_b32 v%d, v%d' % (VL, M_))
    a.wait_lg(n=0)
    I('s_barrier')
    I('ds_read_b128 %s, v%d' % (vr(E + 8, 4), E + 6))
    I('v_mov_b32 v%d, 0x%x' % (E + 7, f2u(1.0 / 768)))
    I('v_add_f32 v%d, v%d, v%d' % (E + 8, E + 8, E + 9))
    I('v_add_f32 v%d, v%d, v%d' % (E + 10, E + 10, E + 11))
    I('v_add_f32 v%d, v%d, v%d' % (E + 8, E + 8, E + 10))
    I('v_fma_f32 v%d, v%d, v%d, v%d' % (E + 8, E + 8, E + 7, VH))
    I('v_rcp_f32 v%d, v%d' % (E + 8, E + 8))
    I('v_mul_f32 v%d, v%d, v%d' % (E + 8, E + 8, VP))
    for i in (2, 3): I('v_fma_f32 v%d, v%d, v%d, v%d' % (GM + i, GM + i, E + 8, VP))
    I('ds_write_b64 v%d, %s offset:512' % (VSL, vr(GM + 2, 2)), tag='sw')
    for i in (0, 1): I('v_fma_f32 v%d, v%d, v%d, v%d' % (GM + i, GM + i, E + 8, VP))
    I('ds_write_b64 v%d, %s' % (VSW, vr(GM, 2)), tag='sw')
    stamp(a, cfg, 's')

    a.sect = 'p2'
    abl = set(cfg.abl.split('+')) - {''}
    I0 = I
    def I(text, tag=None):
        if 'st' in abl and tag == 'st': return
        if 'x' in abl and tag and tag.startswith('x') and tag[1:].isdigit(): return
        if 'raw' in abl and tag == 'raw': return
        if 'bar' in abl and text == 's_barrier': return
        if 'exw' in abl and tag == 'exw': return
        if 'exr' in abl and tag == 'exr': return
        if 'gl' in abl and tag == 'gl': return
        if 's' in abl and tag == 's': return
        if 'valu' in abl and text.startswith(('v_mul', 'v_add', 'v_cvt')): return
        I0(text, tag)
    F = lambda cb: FA if cb % 2 == 0 else FB
    def sread(ks, hr, r):
        I('ds_read_b128 %s, v%d offset:%d' % (vr(r, 4), V_SA, ks * 64 + hr * 32), tag='s')
    def greg(ks, t):
        eb, half = divmod(ks, 2); k, r = home2(nof(eb, t))
        if k == 'l': return ar(A_GL + 4 * half, 4)
        return (vr if k == 'v' else ar)(r + 4 * half, 4)
    def exw(j, g):
        I('ds_write_b128 v%d, %s offset:%d' % (V_EW, ar(A_ACC[j % 2] + 4 * g, 4), (j % 2) * EXBUF + g * 1088), tag='exw')
    def exr(j, sw):
        I('ds_read_b128 %s, v%d offset:%d' % (vr(V_TMP + 4 * sw, 4), V_ER, (j % 2) * EXBUF + sw * EXW), tag='exr')
    def adds(k):
        d, s_ = ((0, 4), (8, 12), (0, 8))[k]
        for i in range(4): I('v_add_f32 v%d, v%d, v%d' % (V_TMP + d + i, V_TMP + d + i, V_TMP + s_ + i))
    def ocvt(j):
        for d in range(2): I('v_cvt_pk_bf16_f32 v%d, v%d, v%d' % (V_O + 2 * (j % 2) + d, V_TMP + 2 * d, V_TMP + 2 * d + 1))
    def swaps():
        for d in range(2): I('v_permlane32_swap_b32 v%d, v%d' % (V_O + d, V_O + 2 + d))
    def store(j):
        cb, t = divmod(j - 1, 7)
        if t < 6: I('buffer_store_dwordx4 %s, v%d, %s, s%d offen offset:%d%s' % (vr(V_O, 4), V_OUT, srd(SRD_OUT), S_ROW + t, cb * 64, cfg.out_flags), tag='st')
        else: I('buffer_store_dwordx4 %s, v%d, %s, s%d offen offset:%d%s' % (vr(V_O, 4), V_OUT2, srd(SRD_OUT), S_ROW, cb * 64, cfg.out_flags), tag='st')
    allu = [(cb, ks, hr) for cb in range(1, 6) for ks in KORD for hr in range(2)]
    sched = {}
    u = 0
    for j in range(1, 35):
        cb = j // 7
        k = 4 if (cb == 0 or j % 2 == 0) else 3
        sched[j] = [x for x in range(u, min(u + k, 24 * (cb + 1)))]
        u += len(sched[j])
    assert u == 120
    ld_next = [0]
    def rawissue(upto):
        while ld_next[0] < min(upto, len(allu)):
            i = ld_next[0]; cb, ks, hr = allu[i]
            if hr == 0: I('s_add_u32 s41, s%d, %d' % (S_W2, cb * 24576 + ks * 2048))
            I('buffer_load_dwordx4 %s, v%d, %s, s41 offen offset:%d sc1' % (vr(V_RAW + 4 * (i % 6), 4), V_L16, ws, hr * 1024), tag='raw')
            ld_next[0] += 1
    def us(u):
        cb, ks, hr = allu[u]; sread(ks, hr, V_S + 4 * (u % 3))
    def umul(u):
        r = V_RAW + 4 * (u % 6); s_ = V_S + 4 * (u % 3)
        for i in range(4): I('v_mul_f32 v%d, v%d, v%d' % (r + i, r + i, s_ + i))
    def ucvt(u):
        cb, ks, hr = allu[u]; r = V_RAW + 4 * (u % 6)
        for d in range(2): I('v_cvt_pk_bf16_f32 v%d, v%d, v%d' % (F(cb) + 4 * ks + 2 * hr + d, r + 2 * d, r + 2 * d + 1))
    def mfma(j, pos):
        cb, t = divmod(j, 7); acc = ar(A_ACC[j % 2], 16)
        if pos == RES: I('v_mfma_f32_32x32x16_bf16 %s, %s, %s, %s' % (acc, ar(A_ID, 4), ar(A_X + 4 * (j % 3), 4), acc))
        else:
            ks = KORD[pos if pos < RES else pos - 1]
            I('v_mfma_f32_32x32x16_bf16 %s, %s, %s, %s' % (acc, vr(F(cb) + 4 * ks, 4), greg(ks, t), ar(A_BIAS, 16) if pos == 0 else acc))
    a.comment('block 0'); stamp(a, cfg, 'B0')
    SL = [V_S, V_S + 4, V_S + 8, V_O]
    u0 = [(ks, hr) for ks in KORD for hr in range(2)]
    a.wait_lg('sw')
    for i in range(4): sread(u0[i][0], u0[i][1], SL[i])
    ki = 0
    for pos in range(13):
        if pos != RES:
            ks = KORD[ki]
            for hr in range(2):
                i = 2 * ki + hr; r = raw0_reg(ks, hr)
                for q in range(4): I('v_mul_f32 v%d, v%d, v%d' % (r + q, r + q, SL[i % 4] + q))
                if i + 4 < 24: sread(u0[i + 4][0], u0[i + 4][1], SL[i % 4])
            if ks == 11:
                for d in (3, 2, 1, 0): I('v_cvt_pk_bf16_f32 v%d, v%d, v%d' % (FA + 44 + d, FA + 40 + 2 * d, FA + 41 + 2 * d))
            else:
                for hr in range(2):
                    for d in range(2): I('v_cvt_pk_bf16_f32 v%d, v%d, v%d' % (FA + 4 * ks + 2 * hr + d, raw0_reg(ks, hr) + 2 * d, raw0_reg(ks, hr) + 2 * d + 1))
            ki += 1
        mfma(0, pos)
        if pos == 2: rawissue(2)
        if pos == 3: rawissue(4)
        if pos == 4: rawissue(6)
        if pos == RES: xload(2)
        if pos == 11: us(0)
        if pos == 12: us(1)
    for j in range(1, 42):
        cb, t = divmod(j, 7)
        a.comment('block %d' % j); stamp(a, cfg, 'B%d' % j)
        U = sched.get(j, []); NU = sched.get(j + 1, [])
        st = j % 2 == 1 and j >= 3
        g = {k: [] for k in range(13)}
        A = lambda k, f, *x: g[k].append(lambda: f(*x))
        if j >= 2:
            A(0, I, 's_barrier')
            A(0, exr, j - 2, 0); A(0, exr, j - 2, 1); A(1, exr, j - 2, 2); A(2, exr, j - 2, 3)
        if len(U) > 0: A(0, umul, U[0])
        A(1, exw, j - 1, 0)
        if len(U) > 2: A(2, us, U[2])
        if len(U) > 0: A(2, ucvt, U[0]); A(2, rawissue, U[0] + 7)
        if len(U) > 1: A(3, umul, U[1]); A(3, ucvt, U[1])
        A(4, gread, t, 0); A(4, exw, j - 1, 1)
        if j >= 2: A(5, adds, 0)
        if len(U) > 1: A(5, rawissue, U[1] + 7)
        A(6, gread, t, 1)
        if len(U) > 3: A(6, us, U[3])
        elif len(NU) > 0: A(6, us, NU[0])
        if j >= 2: A(6, adds, 1)
        if len(U) > 3 and len(NU) > 0: A(7, us, NU[0])
        A(7, exw, j - 1, 2)
        if j >= 2: A(8, adds, 2); A(8, ocvt, j - 2)
        if len(U) > 2: A(9, umul, U[2]); A(9, ucvt, U[2])
        if len(NU) > 1: A(10, us, NU[1])
        A(10, exw, j - 1, 3)
        if len(U) > 3: A(11, umul, U[3]); A(11, ucvt, U[3])
        if st: A(11, swaps)
        if len(U) > 2: A(11 if len(U) == 3 else 12, rawissue, U[2] + 7)
        if len(U) > 3: A(12, rawissue, U[3] + 7)
        A(11 if st else 12, xload, j + 2)
        if st: A(12, store, j - 2)
        if t == 6 and cb < 5:
            for q, k in enumerate((3, 5, 8, 9)):
                A(k, I, 'ds_read_b128 %s, v%d offset:%d' % (ar(A_BIAS + 4 * q, 4), V_SA, 4096 + (cb + 1) * 128 + q * 32), 'bias')
        for pos in range(13):
            if pos == 0 and j >= 2: a.wait_lg('exw')
            mfma(j, pos)
            for f in g[pos]: f()
    a.wait_lg('exw'); I('s_barrier')
    for sw in range(4): exr(40, sw)
    for q in range(4): exw(41, q)
    adds(0); adds(1); adds(2); ocvt(40)
    a.wait_lg('exw'); I('s_barrier')
    for sw in range(4): exr(41, sw)
    adds(0); adds(1); adds(2); ocvt(41); swaps(); store(41)
    stamp(a, cfg, 'end')
    if cfg.stamps: gen_stamps_out(a, cfg, len(cfg.stamps))
    I('s_endpgm')
    I = I0
    a.forget()
    a.label('L_slow2')
    I('s_mov_b32 s5, %d' % SPIN_MAX)
    a.label('L_slow2b')
    early()
    I('s_waitcnt vmcnt(0)'); a.forget()
    I('v_min3_f32 v%d, v%d, v%d, v%d' % (T0, E + 1, E + 3, E + 5))
    I('v_min3_f32 v%d, v%d, v%d, v%d' % (T0 + 1, E + 7, E + 9, E + 11))
    I('v_min3_f32 v%d, v%d, v%d, v%d' % (T0, T0, E + 13, E + 15))
    I('v_min_f32 v%d, v%d, v%d' % (T0, T0, T0 + 1))
    I('v_cmp_neq_f32 vcc, s49, v%d' % T0)
    I('s_sub_u32 s5, s5, 1')
    I('s_cbranch_scc1 L_back2')
    I('s_cbranch_vccnz L_slow2b')
    I('s_branch L_back2')
    a.forget()
    a.label('L_slow1')
    I('s_mov_b32 s5, %d' % SPIN_MAX)
    a.label('L_slow1b')
    I('s_sleep 2')
    I('buffer_load_dword v%d, off, %s, 0 sc1' % (V_FLAG, srd(SRD_DBG)))
    I('s_waitcnt vmcnt(0)'); a.vmq = []
    I('v_readfirstlane_b32 s4, v%d' % V_FLAG)
    I('s_sub_u32 s5, s5, 1')
    I('s_cbranch_scc1 L_back1')
    I('s_cmp_lg_u32 s4, %d' % NSIG)
    I('s_cbranch_scc1 L_slow1b')
    I('s_branch L_back1')
```

```python
import sys, math, struct
from asmlib import *

NAME = 'standalone__modern_conv_block_convnext_v2__vision'
def f2u(x): return struct.unpack('<I', struct.pack('<f', x))[0]

class Cfg:
    stop = None
    stamps = False
    R = 4
    out_flags = ' sc1'
    warm = True
    marks = False
    rt = False
    abl = ''
    pfk = 3
    vplan = None
    budget = 24
    arr = None
    flag_n = 8
    xwarm = 0
    x2fl = ''
    keep = 3
    xfl = ''
    merge = True

ALPHA = 0.1029432397 ** (1.0 / 3.0)
APRIME = 2.302208198 / ALPHA
NMAIN = 224
NH = 32
NSIG = 29
XBYTES = 224 * 224 * 384
WS_W1 = 0
WS_W2 = 0x48000
WS_BIAS = 0xD8000
WS_SUM = 0xD9000
WS_DUMP = 0x200000
WS_STAMP = 0x100000
WS_SIZE = 268435456
HB = 4096
ROWP = 13056
GB = HB + 7 * ROWP
LDS_BYTES = 163840
BIG = 0x80000000
SPIN_MAX = 1 << 18
EXB = 4096; EXW = 4352; EXBUF = 4 * EXW
STB = 40960
BTB = 45056

S_W = 3
SRD_X, SRD_DW, SRD_W1, SRD_WS, SRD_OUT, SRD_GAM, SRD_DBG = 8, 12, 16, 20, 24, 28, 32
S_R0, S_C0, S_XB, S_M0 = 36, 37, 38, 39
S_ONE, S_AP = 60, 62
S_ROW, S_AT, S_W1F, S_W2 = 70, 77, 78, 79
S_STAMP = 80
V_L16, V_YA, V_YB, V_AT, V_GL, V_FLAG = 248, 249, 250, 251, 252, 253
V_ST = 254
A_W1 = 48
A_CA = 144
A_TI = 216

def srd(b): return 's[%d:%d]' % (b, b + 3)

def stamp(a, cfg, name):
    if cfg.stamps and name in cfg.stamps:
        idx = cfg.stamps.index(name)
        a.I('%s s[%d:%d]' % ('s_memrealtime' if cfg.rt else 's_memtime', S_STAMP + 2 * idx, S_STAMP + 2 * idx + 1))

def gen_entry(a, cfg):
    I = a.I
    a.sect = 'entry'
    I('s_load_dwordx2 s[8:9], s[0:1], 0')
    I('s_load_dwordx2 s[12:13], s[0:1], 8')
    I('s_load_dwordx2 s[16:17], s[0:1], 16')
    I('s_load_dwordx2 s[20:21], s[0:1], 64')
    I('s_load_dwordx2 s[32:33], s[0:1], 56')
    stamp(a, cfg, 'start')
    if cfg.stamps: I('s_memrealtime s[98:99]')
    I('v_lshrrev_b32 v1, 6, v0')
    I('v_and_b32 v0, 63, v0')
    I('v_readfirstlane_b32 s%d, v1' % S_W)
    I('v_lshlrev_b32 v%d, 4, v0' % V_L16)
    I('s_mov_b32 s18, %d' % (192 * 768 * 2))
    I('s_mov_b32 s19, 0x20000')
    I('s_mov_b32 s22, %d' % WS_SIZE)
    I('s_mov_b32 s23, 0x20000')
    I('s_mov_b32 s34, 256')
    I('s_mov_b32 s35, 0x20000')
    I('s_cmp_ge_u32 s2, %d' % NMAIN)
    I('s_cbranch_scc1 L_helper')

def acc(g, q): return 8 + 32 * g + 8 * q

def gen_prologue(a, cfg):
    I = a.I
    a.sect = 'pro'
    L = 0
    VX, VW1, VYW, VSW, VE, VB, VD = 242, 245, 246, 247, 200, 208, 226
    I('s_load_dwordx2 s[24:25], s[0:1], 48')
    I('s_load_dwordx2 s[28:29], s[0:1], 32')
    I('s_mov_b32 s10, %d' % XBYTES)
    I('s_mov_b32 s11, 0x20000')
    I('s_mov_b32 s14, 3456')
    I('s_mov_b32 s15, 0x20000')
    I('v_and_b32 v96, 31, v0')
    I('v_lshrrev_b32 v97, 5, v0')
    I('v_bfe_u32 v98, v96, 2, 1')
    I('v_lshrrev_b32 v99, 4, v96')
    I('v_lshlrev_b32 v99, 1, v99')
    I('v_add_u32 v98, v98, v99')
    I('v_sub_u32 v98, v97, v98')
    I('v_add_u32 v98, 2, v98')
    I('v_bfe_u32 v99, v96, 3, 1')
    I('v_and_b32 v100, 3, v96')
    I('v_lshl_add_u32 v99, v99, 2, v100')
    I('s_movk_i32 s40, 1152')
    I('v_lshrrev_b32 v100, 1, v99')
    I('v_lshlrev_b32 v101, 2, v100')
    I('v_mad_u32_u24 v101, v98, s40, v101')
    I('v_cmp_gt_u32 vcc, 3, v98')
    I('v_mov_b32 v102, 0x%x' % BIG)
    I('v_cndmask_b32 v101, v102, v101, vcc')
    I('s_mul_i32 s46, s%d, 96' % S_W)
    DWT = lambda f: 32 + f if f < 16 else 48 + f
    for g in range(6):
        for dx in range(3):
            I('buffer_load_dword v%d, v101, %s, s46 offen offset:%d' % (DWT(g * 3 + dx), srd(SRD_DW), dx * 384 + g * 16), tag='dw')
    stamp(a, cfg, 'i0')
    I('s_and_b32 s42, s2, 7')
    I('s_lshr_b32 s43, s2, 3')
    I('s_mul_i32 s44, s43, 37')
    I('s_lshr_b32 s44, s44, 8')
    I('s_mul_i32 s45, s44, 7')
    I('s_sub_u32 s45, s43, s45')
    I('s_lshl_b32 s42, s42, 2')
    I('s_add_u32 s42, s42, s44')
    I('s_mul_i32 s%d, s42, 7' % S_R0)
    I('s_lshl_b32 s%d, s45, 5' % S_C0)
    I('s_movk_i32 s40, 384')
    I('s_lshl_b32 s47, s%d, 3' % S_W)
    I('s_add_u32 s48, s47, 1')
    I('s_movk_i32 s49, 171')
    for j in range(3):
        I('v_add_u32 v104, %d, v0' % (64 * j))
        I('v_mul_u32_u24 v105, s49, v104')
        I('v_lshrrev_b32 v105, 12, v105')
        I('v_mul_u32_u24 v106, 24, v105')
        I('v_sub_u32 v106, v104, v106')
        I('v_add_u32 v107, s48, v105')
        I('v_bfe_u32 v107, v107, 1, 3')
        I('v_xor_b32 v106, v106, v107')
        I('v_add_u32 v105, s47, v105')
        I('v_mul_u32_u24 v105, s40, v105')
        I('v_lshl_add_u32 v105, v106, 4, v105')
        I('v_subrev_u32 v%d, %d, v105' % (VX + j, 1024 * j))
    I('s_mul_i32 s50, s%d, 224' % S_R0)
    I('s_add_u32 s50, s50, s%d' % S_C0)
    I('s_mul_i32 s%d, s50, 384' % S_ROW)
    I('s_sub_u32 s%d, s%d, %d' % (S_XB, S_ROW, 224 * 384))
    I('s_mul_i32 s%d, s%d, 3072' % (S_M0, S_W))
    I('s_add_u32 s%d, s%d, %d' % (S_M0, S_M0, HB + ROWP + 384))
    def row(hr):
        F = []
        def pre():
            if hr == 0:
                I('s_cmp_eq_u32 s%d, 0' % S_R0)
                I('s_cselect_b32 s52, 0x%x, s%d' % (0x7fff0000, S_XB))
                I('s_mov_b32 m0, s%d' % S_M0)
            else:
                I('s_add_u32 s52, s%d, %d' % (S_XB, hr * 224 * 384))
                I('s_add_u32 m0, s%d, %d' % (S_M0, hr * ROWP))
        for j in range(3):
            def f(j=j):
                pre()
                I('buffer_load_dwordx4 v%d, %s, s52 offen offset:%d%s lds' % (VX + j, srd(SRD_X), 1024 * j, cfg.xfl), tag='r%d' % hr)
            F.append(f)
        return F
    def rown(hr):
        if hr == 0:
            I('s_cmp_eq_u32 s%d, 0' % S_R0)
            I('s_cselect_b32 s52, 0x%x, s%d' % (0x7fff0000, S_XB))
            I('s_mov_b32 m0, s%d' % S_M0)
        else:
            I('s_add_u32 s52, s%d, %d' % (S_XB, hr * 224 * 384))
            I('s_add_u32 m0, s%d, %d' % (S_M0, hr * ROWP))
        for j in range(3):
            I('buffer_load_dwordx4 v%d, %s, s52 offen offset:%d%s lds' % (VX + j, srd(SRD_X), 1024 * j, cfg.xfl), tag='r%d' % hr)
    def edge(i):
        I('s_add_u32 s53, s%d, %d' % (S_W, 4 * i + 1))
        I('s_mul_i32 s53, s53, %d' % ROWP)
        I('s_add_u32 m0, s53, %d' % (HB - 384))
        I('s_mov_b32 exec_hi, 0xffff')
        I('buffer_load_dwordx4 v%d, %s, 0 offen lds' % (VE + i, srd(SRD_X)), tag='e%d' % i)
        I('s_mov_b32 exec_hi, -1')
    def w1ld(k):
        ks, hf = divmod(k, 2)
        if hf == 0: I('s_add_u32 s58, s57, %d' % (ks * 24576))
        I('buffer_load_dwordx4 %s, v%d, %s, s58 offen offset:%d' % (ar(A_W1 + 48 * hf + 4 * ks, 4), VW1, srd(SRD_W1), 64 * hf), tag='w%d' % ks)
    def issue(spec):
        for it in spec.split():
            if it[0] == 'r': rown(int(it[1:]))
            elif it[0] == 'e': edge(int(it[1:]))
            elif it[0] == 'w':
                lo, hi = it[1:].split('-')
                for k in range(2 * int(lo), 2 * int(hi)): w1ld(k)
            elif it[0] == 'p': codepf()
    def codepf():
        if not cfg.pfk: return
        I('s_getpc_b64 s[54:55]')
        a.label('L_pc0')
        I('s_mul_i32 s53, s%d, %d' % (S_W, 1024 * cfg.pfk))
        I('v_add_u32 v103, s53, v%d' % V_L16)
        for k in range(cfg.pfk):
            I('global_load_dwordx4 v[%d:%d], v103, s[54:55] offset:%d' % (VD + 4 * k, VD + 4 * k + 3, 1024 * k), tag='pf')
    plan = cfg.vplan or {'a': 'r0', 'b': 'e0 r1 r2 p', 's0': 'r3', 'g0': 'w0-4 r4 e1', 's1': 'w4-8 r5', 'g1': 'r6', 's2': 'w8-12 r7', 'g2': 'r8 e2'}
    issue(plan['a'])
    stamp(a, cfg, 'i1')
    I('v_cmp_le_u32 vcc, 24, v0')
    I('v_cndmask_b32 v104, 0, 1, vcc')
    I('v_mul_u32_u24 v105, 24, v104')
    I('v_sub_u32 v105, v0, v105')
    I('v_lshlrev_b32 v105, 4, v105')
    for i in range(3):
        I('s_add_u32 s53, s%d, %d' % (S_W, 4 * i))
        I('s_mul_i32 s54, s53, %d' % (224 * 384))
        I('s_add_u32 s54, s54, s%d' % S_XB)
        I('s_add_u32 s54, s54, %d' % ((-224 + 32) * 384 & 0xffffffff))
        I('s_add_u32 s55, s54, %d' % (191 * 384))
        I('s_add_u32 s56, s%d, s53' % S_R0)
        I('s_sub_u32 s57, s56, 2')
        I('s_cmp_lt_u32 s57, 224'); I('s_cselect_b32 s54, s54, 0x%x' % BIG)
        I('s_sub_u32 s57, s53, 1')
        I('s_cmp_lt_u32 s57, 9'); I('s_cselect_b32 s54, s54, 0x%x' % BIG)
        I('s_cmp_lt_u32 s%d, 192' % S_C0); I('s_cselect_b32 s54, s54, 0x%x' % BIG)
        I('s_sub_u32 s57, s56, 1')
        I('s_cmp_lt_u32 s57, 224'); I('s_cselect_b32 s55, s55, 0x%x' % BIG)
        I('s_cmp_lt_u32 s53, 9'); I('s_cselect_b32 s55, s55, 0x%x' % BIG)
        I('s_cmp_gt_u32 s%d, 0' % S_C0); I('s_cselect_b32 s55, s55, 0x%x' % BIG)
        I('s_sub_u32 s55, s55, s54')
        I('v_mul_lo_u32 v106, v104, s55')
        I('v_add3_u32 v%d, v106, s54, v105' % (VE + i))
    I('v_lshrrev_b32 v104, 1, v96')
    I('s_movk_i32 s53, 1536')
    I('v_and_b32 v105, 1, v96')
    I('v_lshlrev_b32 v105, 5, v105')
    I('v_lshl_add_u32 v105, v97, 4, v105')
    I('v_mad_u32_u24 v%d, v104, s53, v105' % VW1)
    I('s_mul_i32 s57, s%d, 384' % S_W)
    issue(plan['b'])
    stamp(a, cfg, 'i2')
    for g in range(6):
        for r in range(acc(g, 1), acc(g, 3), 2): I('v_mov_b64 v[%d:%d], 0' % (r, r + 1))
    I('s_lshl_b32 s53, s%d, 10' % S_W)
    I('v_add_u32 v104, s53, v%d' % V_L16)
    for k in range(4): I('ds_write_b128 v104, v[16:19] offset:%d' % (HB + ROWP - 384 - 16384 + 4096 * k), tag='z')
    I('v_and_b32 v104, 1, v99')
    I('v_lshlrev_b32 v104, 4, v104')
    I('v_mov_b32 v105, 0xffff')
    I('v_lshlrev_b32 v104, v104, v105')
    for r in range(4):
        I('v_cmp_eq_u32 vcc, %d, v100' % r)
        I('v_cndmask_b32 v%d, 0, v104, vcc' % (66 + r))
    I('v_and_b32 v104, 1, v96')
    I('v_lshlrev_b32 v104, 4, v104')
    I('v_mov_b32 v105, 0x3f80')
    I('v_lshlrev_b32 v104, v104, v105')
    I('v_lshrrev_b32 v105, 1, v96')
    I('v_lshlrev_b32 v106, 2, v97')
    I('v_sub_u32 v105, v105, v106')
    for k in range(8):
        I('v_cmp_eq_u32 vcc, %d, v105' % (k if k < 4 else k + 4))
        I('v_cndmask_b32 v106, 0, v104, vcc')
        I('v_accvgpr_write_b32 a%d, v106' % (A_TI + k))
    I('s_movk_i32 s54, %d' % ROWP)
    I('v_mul_u32_u24 v104, s54, v97')
    I('s_mul_i32 s53, s%d, 6' % S_W)
    for dx in range(3):
        I('v_add_u32 v105, %d, v96' % dx)
        I('v_bfe_u32 v106, v105, 1, 3')
        I('v_mad_u32_u24 v105, v105, s40, v104')
        I('v_add_u32 v105, %d, v105' % HB)
        for g in range(6):
            I('s_add_u32 s55, s53, %d' % g)
            I('v_xor_b32 v107, s55, v106')
            I('v_lshl_add_u32 v%d, v107, 4, v105' % (VB + g * 3 + dx))
    I('s_mul_i32 s55, s%d, 3072' % S_W)
    I('s_add_u32 s55, s55, %d' % HB)
    I('v_lshl_add_u32 v105, v96, 4, v104')
    I('v_add_u32 v%d, s55, v105' % VYW)
    I('s_lshr_b32 s55, s%d, 1' % S_W); I('s_lshl_b32 s55, s55, 10')
    I('s_and_b32 s56, s%d, 1' % S_W); I('s_lshl_b32 s56, s56, 3'); I('s_add_u32 s55, s55, s56')
    I('v_add_u32 v%d, s55, v%d' % (VSW, V_L16))
    I('v_add_u32 v%d, %d, v%d' % (V_YA, HB, V_L16))
    I('v_add_u32 v%d, %d, v%d' % (V_YB, HB + 4 * ROWP, V_L16))
    I('s_lshl_b32 s55, s%d, 14' % S_W)
    I('s_add_u32 s55, s55, %d' % GB)
    I('v_add_u32 v%d, s55, v%d' % (V_GL, V_L16))
    I('v_and_b32 v104, 0x19, v0')
    I('v_lshl_or_b32 v104, v97, 2, v104')
    I('v_lshrrev_b32 v105, 1, v0')
    I('v_and_b32 v106, 2, v105')
    I('v_or_b32 v104, v104, v106')
    I('v_and_b32 v105, 1, v105')
    I('v_lshlrev_b32 v104, 3, v104')
    I('v_lshl_or_b32 v%d, v105, 2, v104' % V_AT)
    I('s_mov_b32 s26, %d' % XBYTES); I('s_mov_b32 s27, 0x20000')
    I('s_mov_b32 s30, 1536'); I('s_mov_b32 s31, 0x20000')
    I('s_mov_b32 s%d, 1.0' % S_ONE); I('s_mov_b32 s%d, 1.0' % (S_ONE + 1))
    I('s_mov_b32 s%d, 0x%x' % (S_AP, f2u(APRIME))); I('s_mov_b32 s%d, 0x%x' % (S_AP + 1, f2u(APRIME)))
    for t in range(1, 7): I('s_add_u32 s%d, s%d, %d' % (S_ROW + t, S_ROW + t - 1, 224 * 384))
    I('s_and_b32 s55, s2, %d' % (cfg.R - 1))
    I('s_mul_i32 s55, s55, 6144')
    I('s_mul_i32 s56, s%d, 1536' % S_W)
    I('s_add_u32 s55, s55, s56')
    I('s_add_u32 s%d, s55, %d' % (S_AT, WS_SUM))
    I('s_mul_i32 s%d, s%d, 73728' % (S_W1F, S_W))
    I('s_mul_i32 s%d, s%d, 147456' % (S_W2, S_W))
    I('s_add_u32 s%d, s%d, %d' % (S_W2, S_W2, WS_W2))
    I('s_mov_b32 s6, 0xaaaaaaaa'); I('s_mov_b32 s7, 0xaaaaaaaa')
    I('s_mov_b32 s64, 0xcccccccc'); I('s_mov_b32 s65, 0xcccccccc')
    I('s_mov_b32 s59, 0x%x' % f2u(1.0 / 192))
    stamp(a, cfg, 'i3')
    for f in range(18):
        T = 70 + 4 * (f % 2)
        for r in range(4): I('v_and_b32 v%d, v%d, v%d' % (T + r, DWT(f), 66 + r))
        for r in range(4): I('v_accvgpr_write_b32 a%d, v%d' % (A_CA + 4 * f + r, T + r))
    stamp(a, cfg, 'pre')
    if cfg.arr:
        for tg in cfg.arr.split(','):
            a.wait_vm(tg); stamp(a, cfg, 'a' + tg)

    def yread0(ks):
        I('ds_read_b128 %s, v%d offset:%d' % (ar(4 * ks, 4), V_YA, ks * 1024), tag='y0')
    def stats(q, g):
        b = acc(g, q); F = []
        for i in range(8):
            if g == 0 and i == 0:
                F.append(lambda: I('v_add_f32 v%d, v%d, v%d' % (V_ST, b, b + 1)))
                F.append(lambda: I('v_mul_f32 v%d, v%d, v%d' % (V_ST + 1, b, b)))
            else:
                if not (g == 0 and i == 1): F.append(lambda i=i: I('v_add_f32 v%d, v%d, v%d' % (V_ST, V_ST, b + i)))
                F.append(lambda i=i: I('v_fmac_f32 v%d, v%d, v%d' % (V_ST + 1, b + i, b + i)))
        return F
    def lnfin(q, pk):
        D = VD; buf = (q % 2) * 2048; F = []
        F.append(lambda: I('ds_read_b128 v[%d:%d], v%d offset:%d' % (D, D + 3, V_L16, buf)))
        F.append(lambda: I('ds_read_b128 v[%d:%d], v%d offset:%d' % (D + 4, D + 7, V_L16, buf + 1024)))
        if pk:
            F.append(lambda: I('v_pk_add_f32 %s, %s, %s' % (vr(D, 2), vr(D, 2), vr(D + 2, 2))))
            F.append(lambda: I('v_pk_add_f32 %s, %s, %s' % (vr(D + 4, 2), vr(D + 4, 2), vr(D + 6, 2))))
            F.append(lambda: I('v_pk_add_f32 %s, %s, %s' % (vr(D, 2), vr(D, 2), vr(D + 4, 2))))
        else:
            for (d, s_) in ((0, 2), (1, 3), (4, 6), (5, 7), (0, 4), (1, 5)):
                F.append(lambda d=d, s_=s_: I('v_add_f32 v%d, v%d, v%d' % (D + d, D + d, D + s_)))
        F.append(lambda: I('v_mul_f32 v%d, s59, v%d' % (D, D)))
        F.append(lambda: I('v_mul_f32 v%d, v%d, v%d' % (D + 2, D, D)))
        F.append(lambda: I('v_fma_f32 v%d, v%d, s59, -v%d' % (D + 1, D + 1, D + 2)))
        F.append(lambda: I('v_max_f32 v%d, 0, v%d' % (D + 1, D + 1)))
        F.append(lambda: I('v_add_f32 v%d, 0x%x, v%d' % (D + 1, f2u(1e-5), D + 1)))
        F.append(lambda: I('v_rsq_f32 v%d, v%d' % (D + 1, D + 1)))
        if q == 0: F.append(lambda: I('v_subrev_u32 v%d, %d, v%d' % (D + 8, ROWP, VYW)))
        elif q == 3: F.append(lambda: I('v_add_u32 v%d, %d, v%d' % (VYW, 5 * ROWP, VYW)))
        F.append(lambda: I('v_mul_f32 v%d, 0x%x, v%d' % (D + 2, f2u(ALPHA), D + 1)))
        F.append(lambda: I('v_mul_f32 v%d, v%d, v%d' % (D + 3, D, D + 2)))
        for qq in range(3):
            A, B = acc(2 * qq, q), acc(2 * qq + 1, q)
            for base in (A, B):
                if pk:
                    for i in range(0, 8, 2):
                        F.append(lambda r=base + i: I('v_pk_fma_f32 %s, %s, %s, %s op_sel:[0,0,1] op_sel_hi:[1,0,1] neg_lo:[0,0,1] neg_hi:[0,0,1]' % (vr(r, 2), vr(r, 2), vr(D + 2, 2), vr(D + 2, 2))))
                else:
                    for i in range(8): F.append(lambda r=base + i: I('v_fma_f32 v%d, v%d, v%d, -v%d' % (r, r, D + 2, D + 3)))
            for (d, s0) in ((A, A), (A + 1, A + 4), (A + 4, A + 2), (A + 5, A + 6), (A + 2, B), (A + 3, B + 4), (A + 6, B + 2), (A + 7, B + 6)):
                F.append(lambda d=d, s0=s0: I('v_cvt_pk_bf16_f32 v%d, v%d, v%d' % (d, s0, s0 + 1)))
            for hp in range(2):
                if q == 0:
                    def f(A=A, hp=hp, qq=qq):
                        I('s_mov_b32 exec_lo, 0')
                        I('ds_write_b128 v%d, %s offset:%d' % (D + 8, vr(A + 4 * hp, 4), qq * 1024 + hp * 512), tag='yw')
                        I('s_mov_b32 exec_lo, -1')
                    F.append(f)
                else:
                    off = (2 * q - 1) * ROWP if q < 3 else 0
                    F.append(lambda A=A, hp=hp, qq=qq, off=off: I('ds_write_b128 v%d, %s offset:%d' % (VYW, vr(A + 4 * hp, 4), off + qq * 1024 + hp * 512), tag='yw'))
                F[-1].cost = 20
        return F
    def transp(lo, hi):
        D = VD
        for ks in range(lo, hi):
            r0, r1 = A_W1 + 4 * ks, A_W1 + 48 + 4 * ks
            I('v_mfma_f32_32x32x16_bf16 %s, %s, %s, 0' % (vr(D, 16), ar(r0, 4), ar(A_TI, 4)))
            I('v_mfma_f32_32x32x16_bf16 %s, %s, %s, %s' % (vr(D, 16), ar(r1, 4), ar(A_TI + 4, 4), vr(D, 16)))
            for g in range(4):
                I('v_cvt_pk_bf16_f32 v%d, v%d, v%d' % (D + 4 * g, D + 4 * g, D + 4 * g + 2))
                I('v_cvt_pk_bf16_f32 v%d, v%d, v%d' % (D + 4 * g + 1, D + 4 * g + 1, D + 4 * g + 3))
            for g in range(4):
                I('v_accvgpr_write_b32 a%d, v%d' % (r0 + g, D + 4 * g))
                I('v_accvgpr_write_b32 a%d, v%d' % (r1 + g, D + 4 * g + 1))
    need = {0: ['r0', 'e0'], 1: ['r2', 'e0'], 2: ['r4', 'e1'], 3: ['r6', 'e1'], 4: ['r8', 'e2']}
    tplan = {1: (0, 4), 2: (4, 8), 3: (8, 12)}
    if cfg.vplan and 't' in cfg.vplan: tplan = cfg.vplan['t']
    AH = 8
    for p in range(5):
        a.comment('stage %d' % p)
        stamp(a, cfg, 'c%d' % p)
        a.wait_both(vmtags=need[p], lgtags=['z', 'yw'])
        I('s_barrier')
        stamp(a, cfg, 'b%d' % p)
        def bread(k):
            g, dx = divmod(k, 3)
            I('ds_read_b128 %s, v%d offset:%d' % (ar(4 * ((k + 6) % 12), 4), VB + k, (p % 3) * 2 * ROWP), tag='cb')
        for k in range(AH): bread(k)
        if plan.get('s%d' % p): issue(plan['s%d' % p])
        fill = []
        yq = list(range(12)) if p == 4 else []
        for k in range(18):
            g, dx = divmod(k, 3)
            w = acc(g, p - 1)
            c = '0' if (p == 0 and dx == 0) else vr(w, 16)
            I('v_mfma_f32_32x32x16_bf16 %s, %s, %s, %s' % (vr(w, 16), ar(A_CA + 4 * k, 4), ar(4 * ((k + 6) % 12), 4), c))
            if k + AH < 18: bread(k + AH)
            elif yq and k >= 7 + yq[0]: yread0(yq.pop(0))
            if yq and k + AH >= 18 and k >= 7 + yq[0] and k >= 12: yread0(yq.pop(0))
            if p == 2 and k >= AH - 1 and k - (AH - 1) < 18:
                pass
            if p >= 1 and dx == 0 and g >= 1: fill += stats(p - 1, g - 1)
            if p == 2 and k + AH >= 18 - 0: pass
            for _ in range(5 if dx else 6):
                if fill and not (dx == 0 and g >= 1 and False): fill.pop(0)()
        if p == 2:
            for r in range(18): I('v_add_u32 v%d, %d, v%d' % (VB + r, 6 * ROWP, VB + r))
        while yq: yread0(yq.pop(0))
        while fill: fill.pop(0)()
        if p == 0:
            for g in range(6):
                for r in range(acc(g, 3), acc(g, 4), 2): I('v_mov_b64 v[%d:%d], 0' % (r, r + 1))
        else:
            for f in stats(p - 1, 5): f()
            I('ds_write_b64 v%d, %s offset:%d' % (VSW, vr(V_ST, 2), ((p - 1) % 2) * 2048), tag='st')
            a.wait_lg('st')
            I('s_barrier')
            stamp(a, cfg, 'x%d' % p)
            if p == 4 and cfg.merge and cfg.stop != 'pro':
                stamp(a, cfg, 'pro')
                return lnfin(3, False)
            for f in lnfin(p - 1, True): f()
        stamp(a, cfg, 'n%d' % p)
        if plan.get('g%d' % p): issue(plan['g%d' % p])
        if p in tplan: transp(*tplan[p])
    a.wait_lg(n=0)
    I('s_barrier')
    stamp(a, cfg, 'pro')
    return []

def gen_dump_y(a):
    I = a.I
    I('s_mul_i32 s40, s2, 86016')
    I('s_add_u32 s40, s40, %d' % WS_DUMP)
    I('s_mul_i32 s41, s%d, 3072' % S_W)
    I('s_add_u32 s40, s40, s41')
    I('s_add_u32 s41, s41, %d' % HB)
    I('v_add_u32 v1, s41, v%d' % V_L16)
    for t in range(7):
        for j in range(3):
            I('ds_read_b128 v[4:7], v1 offset:%d' % (j * 1024))
            I('buffer_store_dwordx4 v[4:7], v%d, %s, s40 offen offset:%d' % (V_L16, srd(SRD_WS), j * 1024))
            a.wait_vm(n=0)
        I('v_add_u32 v1, %d, v1' % ROWP)
        I('s_add_u32 s40, s40, 12288')
    I('s_mul_i32 s40, s%d, 24576' % S_W)
    I('s_add_u32 s40, s40, %d' % (WS_DUMP + 0x1400000))
    I('s_cmp_lg_u32 s2, 0')
    I('s_cbranch_scc1 L_end')
    for k in range(24):
        I('buffer_store_dwordx4 %s, v%d, %s, s40 offen' % (ar(A_W1 + 4 * k, 4), V_L16, srd(SRD_WS)))
        I('s_add_u32 s40, s40, 1024')

def gen_helper(a, cfg):
    I = a.I
    a.sect = 'helper'
    a.forget()
    a.label('L_helper')
    L = 0
    I('s_cmp_ge_u32 s2, %d' % (NMAIN + NH))
    I('s_cbranch_scc1 L_end')
    I('s_load_dwordx2 s[24:25], s[0:1], 24')
    I('s_load_dwordx2 s[44:45], s[0:1], 40')
    I('s_mov_b32 s26, %d' % (768 * 192 * 2)); I('s_mov_b32 s27, 0x20000')
    I('s_sub_u32 s40, s2, %d' % NMAIN)
    I('s_waitcnt lgkmcnt(0)'); a.forget()
    I('s_cmp_ge_u32 s40, 24')
    I('s_cbranch_scc1 L_hp')
    I('s_mul_i32 s41, s40, 43'); I('s_lshr_b32 s41, s41, 8')
    I('s_mul_i32 s42, s41, 6'); I('s_sub_u32 s42, s40, s42')
    I('s_mul_i32 s43, s41, 192')
    I('s_lshr_b32 s46, s42, 1'); I('s_lshl_b32 s46, s46, 6'); I('s_add_u32 s43, s43, s46')
    I('s_and_b32 s46, s42, 1'); I('s_lshl_b32 s46, s46, 4'); I('s_add_u32 s43, s43, s46')
    I('v_lshrrev_b32 v10, 5, v0')
    I('v_and_b32 v11, 31, v0')
    I('v_and_b32 v13, 15, v11')
    I('v_lshrrev_b32 v14, 4, v11')
    I('v_lshl_add_u32 v13, v14, 5, v13')
    I('v_lshlrev_b32 v13, 1, v13')
    I('s_movk_i32 s47, 3072')
    I('v_mad_u32_u24 v13, v10, s47, v13')
    I('s_mul_i32 s47, s%d, %d' % (S_W, 48 * 1536))
    I('s_lshl_b32 s48, s43, 1')
    I('s_add_u32 s47, s47, s48')
    for k in range(3):
        for g in range(4):
            for b in range(2):
                I('buffer_load_ushort v%d, v13, %s, s47 offen offset:%d' % (40 + k * 8 + 2 * g + b, srd(SRD_W1), 1536 * b))
            I('s_add_u32 s47, s47, %d' % (4 * 1536))
    I('s_movk_i32 s46, 1536')
    I('v_lshlrev_b32 v12, 1, v11')
    I('v_mad_u32_u24 v12, v10, s46, v12')
    I('s_lshr_b32 s46, s%d, 1' % S_W); I('s_lshl_b32 s46, s46, 5')
    I('s_and_b32 s48, s%d, 1' % S_W); I('s_lshl_b32 s48, s48, 3')
    I('s_add_u32 s46, s46, s48')
    I('s_add_u32 s46, s46, s43')
    I('s_mul_i32 s46, s46, 384')
    for cb in range(6):
        for i4 in range(4):
            I('buffer_load_ushort v%d, v12, %s, s46 offen offset:%d' % (16 + cb * 4 + i4, srd(24), i4 * 384 + cb * 64))
    I('s_mul_i32 s46, s40, 12288')
    I('s_mul_i32 s48, s%d, 3072' % S_W); I('s_add_u32 s46, s46, s48')
    for k in range(3):
        for r in range(4):
            I('v_lshl_or_b32 v%d, v%d, 16, v%d' % (64 + k * 4 + r, 40 + k * 8 + 2 * r + 1, 40 + k * 8 + 2 * r))
        I('buffer_store_dwordx4 v[%d:%d], v%d, %s, s46 offen offset:%d sc1' % (64 + k * 4, 67 + k * 4, V_L16, srd(SRD_WS), WS_W1 + k * 1024))
    I('s_mul_i32 s46, s41, 147456')
    I('s_lshl_b32 s48, s42, 12'); I('s_add_u32 s46, s46, s48')
    I('s_lshl_b32 s48, s%d, 10' % S_W); I('s_add_u32 s46, s46, s48')
    I('s_add_u32 s46, s46, %d' % WS_W2)
    for cb in range(6):
        for i4 in range(4): I('v_lshlrev_b32 v%d, 16, v%d' % (16 + cb * 4 + i4, 16 + cb * 4 + i4))
        I('buffer_store_dwordx4 v[%d:%d], v%d, %s, s46 offen sc1' % (16 + cb * 4, 19 + cb * 4, V_L16, srd(SRD_WS)))
        I('s_add_u32 s46, s46, 24576')
    I('s_branch L_hdone')
    a.forget()
    a.label('L_hp')
    I('s_getpc_b64 s[46:47]')
    a.label('L_pc')
    I('s_sub_u32 s46, s46, L_pc-%s_kernel' % NAME)
    I('s_subb_u32 s47, s47, 0')
    I('s_lshl_b32 s48, s%d, 10' % S_W)
    I('v_add_u32 v2, s48, v%d' % V_L16)
    I('s_mov_b32 s48, (L_helper-%s_kernel)/4096' % NAME)
    a.label('L_pf')
    I('global_load_dwordx4 v[252:255], v2, s[46:47]')
    a.vmq = []
    I('v_add_u32 v2, 4096, v2')
    I('s_sub_u32 s48, s48, 1')
    I('s_cmp_lg_u32 s48, 0')
    I('s_cbranch_scc1 L_pf')
    I('s_cmp_ge_u32 s40, %d' % NSIG)
    I('s_cbranch_scc1 L_end')
    I('s_cmp_ge_u32 s40, 28')
    I('s_cbranch_scc1 L_hz')
    I('s_sub_u32 s41, s40, 24')
    I('s_mul_i32 s42, s41, 192'); I('s_mul_i32 s43, s%d, 48' % S_W); I('s_add_u32 s42, s42, s43')
    I('s_lshl_b32 s43, s42, 1')
    I('s_add_u32 s44, s44, s43'); I('s_addc_u32 s45, s45, 0')
    I('s_load_dwordx8 s[72:79], s[44:45], 0')
    I('s_load_dwordx8 s[80:87], s[44:45], 32')
    I('s_load_dwordx8 s[88:95], s[44:45], 64')
    I('s_mul_i32 s42, s42, 384')
    I('v_lshlrev_b32 v12, 3, v0')
    I('v_cmp_gt_u32 vcc, 48, v0')
    I('v_mov_b32 v13, 0x%x' % BIG)
    I('v_cndmask_b32 v12, v13, v12, vcc')
    for r in range(48):
        I('buffer_load_dwordx2 v[%d:%d], v12, %s, s42 offen offset:%d' % (104 + 2 * r, 105 + 2 * r, srd(24), (r % 8) * 384))
        if r % 8 == 7: I('s_add_u32 s42, s42, 3072')
    for i in range(4): I('v_mov_b32 v%d, 0' % (4 + i))
    for r in range(48):
        sreg = 72 + r // 2
        if r % 2 == 0: I('s_lshl_b32 s46, s%d, 16' % sreg)
        else: I('s_and_b32 s46, s%d, 0xffff0000' % sreg)
        for d in range(2):
            I('v_lshlrev_b32 v8, 16, v%d' % (104 + 2 * r + d))
            I('v_and_b32 v9, 0xffff0000, v%d' % (104 + 2 * r + d))
            I('v_fmac_f32 v%d, s46, v8' % (4 + 2 * d))
            I('v_fmac_f32 v%d, s46, v9' % (5 + 2 * d))
    I('s_lshl_b32 s46, s%d, 10' % S_W)
    I('v_add_u32 v10, s46, v%d' % V_L16)
    I('ds_write_b128 v10, v[4:7]')
    a.wait_lg(n=0)
    I('s_barrier')
    for k in range(4): I('ds_read_b128 v[%d:%d], v%d offset:%d' % (16 + 4 * k, 19 + 4 * k, V_L16, k * 1024))
    for k in range(1, 4):
        for i in range(4): I('v_add_f32 v%d, v%d, v%d' % (16 + i, 16 + i, 16 + 4 * k + i))
    I('v_cndmask_b32 v12, v13, v%d, vcc' % V_L16)
    I('s_mul_i32 s46, s41, 768')
    I('s_add_u32 s46, s46, %d' % WS_BIAS)
    I('s_cmp_lg_u32 s%d, 0' % S_W)
    I('s_cbranch_scc1 L_hdone')
    I('buffer_store_dwordx4 v[16:19], v12, %s, s46 offen sc1' % srd(SRD_WS))
    I('s_branch L_hdone')
    a.forget()
    a.label('L_hz')
    nz = cfg.R * 6144
    nz = (nz + 4095) // 4096 * 4096
    for i in range(4): I('v_mov_b32 v%d, 0' % (4 + i))
    I('s_lshl_b32 s46, s%d, 10' % S_W)
    I('s_add_u32 s46, s46, %d' % WS_SUM)
    for k in range(nz // 4096):
        I('buffer_store_dwordx4 v[4:7], v%d, %s, s46 offen sc1' % (V_L16, srd(SRD_WS)))
        I('s_add_u32 s46, s46, 4096')
    a.label('L_hdone')
    I('s_waitcnt vmcnt(0) lgkmcnt(0)'); a.forget()
    I('s_barrier')
    I('s_cmp_lg_u32 s%d, 0' % S_W)
    I('s_cbranch_scc1 L_end')
    I('v_mov_b32 v4, 1')
    I('v_mov_b32 v5, 0')
    I('s_mov_b64 exec, 1')
    I('buffer_atomic_add v4, v5, %s, 0 offen sc1' % srd(SRD_DBG))
    if cfg.stamps:
        I('s_waitcnt vmcnt(0)'); a.vmq = []
        I('s_memrealtime s[100:101]')
        I('s_waitcnt lgkmcnt(0)'); a.smem_pending = set()
        I('s_lshl_b32 s40, s2, 8'); I('s_add_u32 s40, s40, %d' % WS_STAMP)
        I('v_mov_b32 v2, s98'); I('v_mov_b32 v3, s100')
        I('buffer_store_dwordx2 v[2:3], v5, %s, s40 offen' % srd(SRD_WS))
    a.label('L_end')
    I('s_endpgm')

def gen_stamps_out(a, cfg, n):
    I = a.I
    I('s_memrealtime s[100:101]')
    I('s_waitcnt lgkmcnt(0)'); a.smem_pending = set()
    I('s_lshl_b32 s40, s2, 2'); I('s_add_u32 s40, s40, s%d' % S_W); I('s_lshl_b32 s40, s40, 6')
    I('s_add_u32 s40, s40, %d' % WS_STAMP)
    I('v_mov_b32 v1, 0')
    I('s_mov_b64 exec, 1')
    for k in list(range(n)) + [9, 10]:
        I('v_mov_b32 v2, s%d' % (S_STAMP + 2 * k))
        I('buffer_store_dword v2, v1, %s, s40 offen offset:%d' % (srd(SRD_WS), 4 * k))
    I('s_mov_b64 exec, -1')

def build(cfg):
    a = Asm()
    gen_entry(a, cfg)
    tail = gen_prologue(a, cfg)
    if cfg.stop == 'pro':
        if cfg.stamps: gen_stamps_out(a, cfg, len(cfg.stamps))
        gen_dump_y(a)
        a.I('s_branch L_end')
    else:
        import g3b
        g3b.gen_main(a, cfg, tail)
    gen_helper(a, cfg)
    src = '; generated by gen/g3.py\n'
    src += '; @launch grid=(%d,1,1) block=(256,1,1) lds=%d\n' % (NMAIN + NH, LDS_BYTES)
    src += '.amdgcn_target "amdgcn-amd-amdhsa--gfx950"\n.text\n.globl %s_kernel\n.p2align 8\n.type %s_kernel,@function\n%s_kernel:\n' % (NAME, NAME, NAME)
    src += a.text()
    src += '''.section .rodata,"a"
.p2align 6
.amdhsa_kernel %s_kernel
  .amdhsa_next_free_vgpr 512
  .amdhsa_next_free_sgpr 102
  .amdhsa_accum_offset 256
  .amdhsa_group_segment_fixed_size 0
  .amdhsa_kernarg_size 72
  .amdhsa_user_sgpr_count 2
  .amdhsa_user_sgpr_kernarg_segment_ptr 1
  .amdhsa_system_sgpr_workgroup_id_x 1
.end_amdhsa_kernel
''' % NAME
    return src, a

if __name__ == '__main__':
    sys.modules['g3'] = sys.modules['__main__']
    cfg = Cfg()
    out = sys.argv[1] if len(sys.argv) > 1 else 'cdna_kernels/%s.s' % NAME
    for kv in sys.argv[2:]:
        k, v = kv.split('=', 1)
        setattr(cfg, k, eval(v))
    if cfg.stamps is True: cfg.stamps = ['start', 'pre', 'pro', 'p1', 'sync', 's', 'end']
    if isinstance(cfg.stamps, str): cfg.stamps = cfg.stamps.split(',')
    src, a = build(cfg)
    open(out, 'w').write(src)
    print('instrs', a.count(), 'bytes', len(src), 'nops', dict(a.nops), 'waits', dict(a.nwaits))
```

```python
import sys, numpy as np
from hiprun import *
def kern(name, body, it):
    pre = "".join(f"    buffer_load_dwordx4 a[{4*i}:{4*i+3}], v100, s[12:15], 0 offen offset:{(i%4)*1024}\n" + ("    v_add_u32 v100, 4096, v100\n" if i%4==3 else "") for i in range(64))
    pre += "    s_waitcnt vmcnt(0)\n" + "".join(f"    v_accvgpr_read_b32 v{i}, a{i}\n" for i in range(0, 244))
    return f"""
.text
.globl {name}
.p2align 8
.type {name},@function
{name}:
    s_load_dwordx2 s[8:9], s[0:1], 0
    s_load_dwordx2 s[12:13], s[0:1], 8
    v_lshrrev_b32 v120, 6, v0
    v_and_b32 v101, 63, v0
    v_readfirstlane_b32 s20, v120
    v_lshlrev_b32 v248, 4, v101
    s_mov_b32 s10, 0x100000
    s_mov_b32 s11, 0x00020000
    s_mov_b32 s14, 0x400000
    s_mov_b32 s15, 0x00020000
    s_mul_i32 s22, s20, 65536
    v_add_u32 v100, s22, v248
    v_lshrrev_b32 v102, 5, v101
    v_and_b32 v103, 31, v101
    s_mul_i32 s47, s20, 4352
    s_add_u32 s47, s47, 8192
    s_movk_i32 s48, 544
    v_mul_u32_u24 v249, s48, v102
    v_lshl_add_u32 v249, v103, 4, v249
    v_add_u32 v249, s47, v249
    v_bfe_u32 v104, v101, 2, 3
    s_lshl_b32 s47, s20, 3
    v_add_u32 v104, s47, v104
    v_and_b32 v105, 3, v101
    v_lshl_add_u32 v106, v105, 1, v102
    v_mul_u32_u24 v250, s48, v106
    v_lshl_add_u32 v250, v104, 4, v250
    v_add_u32 v250, 8192, v250
    s_lshl_b32 s47, s20, 14
    s_add_u32 s47, s47, 95488
    v_add_u32 v252, s47, v248
    s_lshl_b32 s47, s20, 10
    v_lshl_add_u32 v254, v102, 4, s47
    s_mov_b32 s60, 1.0
    s_mov_b32 s61, 1.0
    s_mov_b32 s62, 4.9
    s_mov_b32 s63, 4.9
    s_waitcnt lgkmcnt(0)
{pre}
    s_mov_b32 s21, {it}
    s_waitcnt vmcnt(0)
    s_barrier
    s_memtime s[24:25]
    s_memrealtime s[28:29]
    s_waitcnt lgkmcnt(0)
.p2align 6
L_{name}:
{body}
    s_sub_u32 s21, s21, 1
    s_cmp_lg_u32 s21, 0
    s_cbranch_scc1 L_{name}
    s_nop 15
    s_memtime s[26:27]
    s_memrealtime s[30:31]
    s_waitcnt lgkmcnt(0) vmcnt(0)
    s_sub_u32 s26, s26, s24
    s_sub_u32 s30, s30, s28
    s_lshl_b32 s22, s2, 2
    s_add_u32 s22, s22, s20
    s_lshl_b32 s22, s22, 3
    v_mov_b32 v1, s22
    v_mov_b32 v2, s26
    v_mov_b32 v3, s30
    buffer_store_dwordx2 v[2:3], v1, s[8:11], 0 offen
    s_waitcnt vmcnt(0)
    s_endpgm
.section .rodata,"a"
.p2align 6
.amdhsa_kernel {name}
  .amdhsa_next_free_vgpr 512
  .amdhsa_next_free_sgpr 102
  .amdhsa_accum_offset 256
  .amdhsa_group_segment_fixed_size 0
  .amdhsa_kernarg_size 16
  .amdhsa_user_sgpr_count 2
  .amdhsa_user_sgpr_kernarg_segment_ptr 1
  .amdhsa_system_sgpr_workgroup_id_x 1
.end_amdhsa_kernel
"""
def run(base, tests, reps=1):
    src = '.amdgcn_target "amdgcn-amd-amdhsa--gfx950"\n'
    names = {}; km = ""
    for i, (k, (b, it, nb)) in enumerate(tests.items()):
        nm = f"k{i}"; names[k] = nm
        src += kern(nm, "".join("    " + x + "\n" for x in b), it)
        km += KM.format(name=nm, ka=16, vgpr=512)
    src += META % km
    open(base + ".s", "w").write(src)
    assemble(base + ".s", base + ".co")
    if len(sys.argv) > 1 and sys.argv[1] == "asm": sys.exit(0)
    m = Mod(base + ".co")
    out = Buf(1 << 20); rnd = Buf(1 << 22); big = Buf(1 << 28)
    rng = np.random.default_rng(0)
    v = rng.standard_normal(1 << 21).astype(np.float32) * 0.15
    rnd.up((v.view(np.uint32) >> 16).astype(np.uint16))
    for rep in range(reps):
      for k, (b, it, nb) in tests.items():
        f = m.fn(names[k]); R = []
        for r in range(5):
            launch(f, (224,1,1), (256,1,1), [out.ptr, rnd.ptr], lds=81920*2); sync()
            o = out.down(np.uint32, 224*8).reshape(224*4, 2).astype(np.float64)
            R.append(o.mean(0))
        R = np.median(np.array(R), 0)
        print("%-26s cyc/blk %.1f  ns/blk %.1f  GHz %.3f  total us %.1f" % (k, R[0]/(nb*it), R[1]*10/(nb*it), R[0]/R[1]/10, R[1]/100))
```

```python
import sys, re, numpy as np
from hiprun import *
import mb16k
src0 = open('w2.s').read()
def blocks(a, b):
    i = src0.index('; block %d\n' % a); j = src0.index('; block %d\n' % b)
    return [l.strip() for l in src0[i:j].split('\n') if l.strip() and not l.startswith(';')]
def flt(L, drop):
    o = []
    for l in L:
        if 'vm' in drop and l.startswith('buffer_'): continue
        if 'vm' in drop and l.startswith('s_waitcnt'):
            l = re.sub(r'vmcnt\(\d+\)\s*', '', l)
            if l.strip() == 's_waitcnt': continue
        if 'bar' in drop and l == 's_barrier': continue
        if 'exw' in drop and l.startswith('ds_write'): continue
        if 'dsr' in drop and l.startswith('ds_read'): continue
        if 'wait' in drop and l.startswith('s_waitcnt'): continue
        if 'valu' in drop and l.startswith(('v_mul', 'v_add', 'v_cvt', 'v_perm')): continue
        if 'vw' in drop and l.startswith('ds_write'):
            l = re.sub(r'a\[(\d+):(\d+)\]', lambda m: 'v[%d:%d]' % (120 + int(m.group(1)), 120 + int(m.group(2))), l)
        o.append(l)
    return o
B = blocks(36, 40); BU = blocks(16, 20)
tests = {}
tests['loop novm'] = (flt(B, {'vm'}), 10, 4)
tests['line novm'] = (flt(B, {'vm'}) * 10, 1, 40)
tests['loop novm nobar'] = (flt(B, {'vm', 'bar'}), 10, 4)
tests['loop novm nobar nowait'] = (flt(B, {'vm', 'bar', 'wait'}), 10, 4)
tests['loop novm vw'] = (flt(B, {'vm', 'vw'}), 10, 4)
tests['loop novm noexw'] = (flt(B, {'vm', 'exw', 'wait'}), 10, 4)
tests['loop novm nodsr'] = (flt(B, {'vm', 'dsr', 'wait'}), 10, 4)
tests['loop novm novalu'] = (flt(B, {'vm', 'valu'}), 10, 4)
tests['U loop novm'] = (flt(BU, {'vm'}), 10, 4)
tests['U line novm'] = (flt(BU, {'vm'}) * 10, 1, 40)
tests['U loop novm nobar'] = (flt(BU, {'vm', 'bar'}), 10, 4)
mb16k.run('mb17', tests)
```

```python
import sys, re, numpy as np
from hiprun import *
import mb16k
def M(p): return f"v_mfma_f32_32x32x16_bf16 v[0:15], a[{48+4*(p%12)}:{51+4*(p%12)}], a[{4*(p%12)}:{3+4*(p%12)}], v[0:15]"
E = lambda i: f'v_exp_f32 v{48+i%16}, v{48+i%16}'
C = lambda i: f'v_cvt_pk_bf16_f32 v{112+i%8}, v{16+2*(i%8)}, v{17+2*(i%8)}'
D = lambda i: f'ds_read_b128 a[{144+4*(i%12)}:{147+4*(i%12)}], v248 offset:{1024*(i%12)}'
L = lambda i: f'buffer_load_dwordx4 v[{120+4*(i%12)}:{123+4*(i%12)}], v248, s[12:15], 0 offen offset:{1024*(i%4)}'
LA = lambda i: f'buffer_load_dwordx4 a[{200+4*(i%12)}:{203+4*(i%12)}], v248, s[12:15], 0 offen offset:{1024*(i%4)}'
S = 's_add_u32 s40, s40, 4096'
def T(norm, spec, every):
    b = []
    for rep in range(2):
        for p in range(12):
            b.append(M(p))
            g = spec if p % every == 1 else norm
            for j, c in enumerate(g):
                b.append({'E': E(2*p+j), 'C': C(p+j), 'D': D(p), 'L': L(p), 'A': LA(p), 'S': S}[c])
        b.append('s_waitcnt vmcnt(4) lgkmcnt(0)')
    return (b, 40, 2)
tests = {}
for norm in ('EECC', 'DEEC'):
    tests[norm] = T(norm, norm, 3)
    for spec in (('LEECC', 'LEEC', 'LEE', 'SLEEC', 'AEEC', 'EELC', 'ELEC', 'EECL') if norm == 'EECC' else ('DLEEC', 'DLEE', 'LDEE', 'DEEL', 'DELE', 'DSLEE', 'DAEE', 'DLEC')):
        for ev in (3, 6): tests['%s %s /%d' % (norm, spec, ev)] = T(norm, spec, ev)
mb16k.run('mb29', tests, 1)
```
